```python
import torch

def _softmax(x, axis=-1):
    return torch.softmax(x, dim=axis)
def _gelu(x):
    return torch.nn.functional.gelu(x, approximate="tanh")
def _silu(x):
    return torch.nn.functional.silu(x)
def _sigmoid(x):
    return torch.sigmoid(x)
def _layernorm(x, axis=-1, eps=1e-5):
    m = x.mean(dim=axis, keepdim=True)
    v = x.var(dim=axis, keepdim=True, unbiased=False)
    return (x - m) / torch.sqrt(v + eps)
def _scatter_add(tgt, idx, src, axis=0):
    return tgt.clone().index_add_(axis, idx, src)
def _segment_sum(src, seg, n):
    out = torch.zeros((n,) + src.shape[1:], dtype=src.dtype)
    return out.index_add_(0, seg, src)
def _pad(x, pw):
    flat = tuple(v for pair in reversed(pw) for v in pair)
    return torch.nn.functional.pad(x, flat)

kernel_name = 'parallel_sum__spectral_gfnet__glu_gated_bilinear__prompt'

def setup_inputs():

    _w = (lambda a: (lambda t: t.to(torch.bfloat16) if t.is_floating_point() else t)(torch.as_tensor(a)))
    def _A_setup():
        B, S, D = 1, 2048, 640
        Df = D // 2 + 1
        return {
            "x": _w((lambda *s: torch.randn(*s, dtype=torch.bfloat16) * 0.05)(B, S, D)),
            "w_r": _w((lambda *s: torch.randn(*s, dtype=torch.bfloat16) * 0.4)(S, Df) * 0.02),
            "w_i": _w((lambda *s: torch.randn(*s, dtype=torch.bfloat16) * 0.4)(S, Df) * 0.02),
        }
    _A_in = _A_setup()

    def _B_setup():
        B, S, D, F = 1, 2048, 640, 1536
        return {
            "x": _w((lambda *s: torch.randn(*s, dtype=torch.bfloat16) * 0.05)(B, S, D)),
            "w_gate": _w((lambda *s: torch.randn(*s, dtype=torch.bfloat16) * 0.2)(D, F) * (D ** -0.5)),
            "w_up": _w((lambda *s: torch.randn(*s, dtype=torch.bfloat16) * 0.2)(D, F) * (D ** -0.5)),
            "w_down": _w((lambda *s: torch.randn(*s, dtype=torch.bfloat16) * 0.2)(F, D) * (F ** -0.5)),
        }
    _B_in = _B_setup()

    return {
        "A_x": _A_in["x"],
        "A_w_r": _A_in["w_r"],
        "A_w_i": _A_in["w_i"],
        "B_x": _B_in["x"],
        "B_w_gate": _B_in["w_gate"],
        "B_w_up": _B_in["w_up"],
        "B_w_down": _B_in["w_down"],
    }

def reference(A_x, A_w_r, A_w_i, B_x, B_w_gate, B_w_up, B_w_down):
    def _A_ref(x, w_r, w_i):
        B, S, D = x.shape
        X = (lambda x, axes=(-2,-1): torch.fft.rfft2(x.float(), dim=axes))(x, axes=(-2, -1))
        W = w_r + 1j * w_i
        X = X * W
        y = (lambda x, s, axes=(-2,-1): torch.fft.irfft2(x, s=s, dim=axes).to(torch.bfloat16))(X, (S, D), axes=(-2, -1))
        return y

    def _B_ref(x, w_gate, w_up, w_down):
        g = torch.einsum("bsd,df->bsf", x, w_gate)
        u = torch.einsum("bsd,df->bsf", x, w_up)
        h = g * u
        return torch.einsum("bsf,fd->bsd", h, w_down)

    x = A_x
    xn = _layernorm(x, axis=-1)
    return x + _A_ref(xn, A_w_r, A_w_i) + _B_ref(xn, B_w_gate, B_w_up, B_w_down)
```

```python
import re
TRANS = ('v_exp_f32','v_log_f32','v_rcp_f32','v_rsq_f32','v_sqrt_f32','v_sin_f32','v_cos_f32')
_reg = re.compile(r'\b([vas])(\d+)\b|\b([vas])\[(\d+):(\d+)\]')
def regs_of(op):
    out = set()
    for m in _reg.finditer(op):
        if m.group(1): out.add((m.group(1), int(m.group(2))))
        else:
            for i in range(int(m.group(4)), int(m.group(5)) + 1): out.add((m.group(3), i))
    if re.search(r'\bvcc\b', op): out |= {('s', 106), ('s', 107)}
    if re.search(r'\bm0\b', op): out.add(('s', 124))
    return out
def split_ops(s):
    ops, depth, cur = [], 0, ''
    for ch in s:
        if ch == '[': depth += 1
        if ch == ']': depth -= 1
        if ch == ',' and depth == 0: ops.append(cur.strip()); cur = ''
        else: cur += ch
    if cur.strip(): ops.append(cur.strip())
    return ops
class Ins:
    def __init__(s, text):
        s.text = text
        t = text.split(';')[0].strip()
        p = t.split(None, 1)
        s.op = p[0]; ops = split_ops(p[1]) if len(p) > 1 else []
        s.ops = ops
        op = s.op
        s.mfma = op.startswith('v_mfma')
        s.valu = op.startswith('v_') and not s.mfma
        s.vmem = op.startswith(('buffer_', 'global_'))
        s.ds = op.startswith('ds_')
        s.salu = op.startswith('s_')
        s.lds_dma = s.vmem and (' lds' in t or 'load_lds' in op)
        s.dpp = '_dpp' in op or 'row_' in t or 'quad_perm' in t
        s.w = set(); s.r = set()
        if s.mfma:
            s.w = regs_of(ops[0]); s.ab = regs_of(ops[1]) | regs_of(ops[2]); s.c = regs_of(ops[3]); s.r = s.ab | s.c
            s.passes = 8 if '32x32' in op else 4
        elif s.valu:
            if op.startswith('v_cmp'):
                s.w = regs_of(ops[0]); rest = ops[1:]
            elif 'permlane' in op and 'swap' in op:
                s.w = regs_of(ops[0]) | regs_of(ops[1]); rest = ops
            elif op.startswith(('v_add_co', 'v_addc_co', 'v_sub_co')):
                s.w = regs_of(ops[0]) | regs_of(ops[1]); rest = ops[2:]
            else:
                s.w = regs_of(ops[0]); rest = ops[1:]
                if op.startswith(('v_fmac', 'v_dot2c', 'v_writelane')) or s.dpp: rest = ops
            for o in rest: s.r |= regs_of(o)
            if op.startswith('v_cndmask') and len(ops) == 3: s.r |= {('s',106),('s',107)}
        elif s.vmem:
            if 'load' in op and not s.lds_dma:
                s.w = regs_of(ops[0]); rest = ops[1:]
            else: rest = ops
            for o in rest: s.r |= regs_of(o)
            if s.lds_dma: s.r.add(('s', 124))
            s.sdata = regs_of(ops[0]) if ('store' in op and ('x4' in op or 'x3' in op) and op.startswith('buffer')) else set()
        elif s.ds:
            if 'read' in op or 'permute' in op or 'swizzle' in op or 'rtn' in op:
                s.w = regs_of(ops[0]); rest = ops[1:]
            else: rest = ops
            for o in rest: s.r |= regs_of(o)
        elif s.salu:
            if ops and not op.startswith(('s_cmp', 's_waitcnt', 's_nop', 's_branch', 's_cbranch', 's_barrier', 's_sleep', 's_setprio', 's_endpgm')):
                s.w = regs_of(ops[0])
                for o in ops[1:]: s.r |= regs_of(o)
            else:
                for o in ops: s.r |= regs_of(o)
        s.states = (int(ops[0], 0) + 1) if op == 's_nop' else 1
def need(p, c):
    n = 0
    pv = {r for r in p.w if r[0] != 's'}; ps = {r for r in p.w if r[0] == 's'}
    if p.valu:
        if c.mfma and pv & c.r: n = max(n, 2)
        if c.valu and pv & c.r:
            if p.op in TRANS or p.op[:-4] in TRANS: n = max(n, 1)
            if c.dpp or 'permlane' in c.op: n = max(n, 2)
            if 'readfirstlane' in c.op or 'readlane' in c.op: n = max(n, 1)
        if ps & c.r:
            if c.vmem: n = max(n, 5)
            elif c.valu: n = max(n, 4 if 'lane' in c.op else 2)
            elif c.salu: n = max(n, 2)
    if p.mfma:
        big = 12 if p.passes == 8 else 8
        if c.mfma:
            if p.w & c.ab: n = max(n, big)
            if p.w & c.c and not (p.w == c.c and p.passes == c.passes): n = max(n, big - 2)
            if p.w & c.w and not (p.w == c.c and p.passes == c.passes): n = max(n, big)
        elif (c.valu or c.vmem or c.ds) and (p.w & (c.r | c.w)): n = max(n, big)
        if c.valu and (p.c & c.w): n = max(n, 7 if p.passes == 8 else 3)
    if p.salu and ('s', 124) in p.w and (c.lds_dma): n = max(n, 1)
    if p.vmem and getattr(p, 'sdata', None) and (c.valu or c.mfma or c.ds or c.vmem) and (p.sdata & c.w): n = max(n, 2)
    return n
class Asm:
    def __init__(s):
        s.lines = []; s.hist = []; s.nv = 0; s.na = 0; s.maxv = 0
    def raw(s, t): s.lines.append(t)
    def label(s, l, flush=True):
        if flush: s.flush()
        s.lines.append(l + ':')
    def flush(s):
        d = 0; worst = 0
        for p in reversed(s.hist):
            lim = (12 if p.passes == 8 else 8) if p.mfma else (5 if (p.valu and any(r[0]=='s' for r in p.w)) else (2 if (p.valu or p.vmem) else (1 if p.salu else 0)))
            worst = max(worst, lim - d); d += p.states
            if d > 12: break
        s.nop(worst); s.hist = []
    def nop(s, n):
        while n > 0:
            k = min(n, 16); i = Ins('s_nop %d' % (k - 1)); s.lines.append('    ' + i.text); s.hist.append(i); n -= k
    def __call__(s, text):
        for t in text.strip().split('\n'):
            t = t.strip()
            if not t or t.startswith(';'): continue
            c = Ins(t)
            d = 0; worst = 0
            for p in reversed(s.hist):
                worst = max(worst, need(p, c) - d); d += p.states
                if d > 12: break
            s.nop(worst)
            s.lines.append('    ' + t); s.hist.append(c)
            if len(s.hist) > 40: s.hist = s.hist[-20:]
            for r in c.w | c.r:
                if r[0] == 'v': s.maxv = max(s.maxv, r[1] + 1)
            if c.op.startswith(('s_branch', 's_cbranch')): pass
    def v(s, n=1, align=1):
        a = max(align, 2 if n > 1 else 1)
        if n >= 4: a = max(a, 4)
        s.nv = (s.nv + a - 1) // a * a
        r = s.nv; s.nv += n
        assert s.nv <= 256, 'out of VGPRs'
        return r
    def text(s): return '\n'.join(s.lines) + '\n'
def vr(b, n=1, k='v'):
    return '%s%d' % (k, b) if n == 1 else '%s[%d:%d]' % (k, b, b + n - 1)
```

```python
import numpy as np
S, D, F = 2048, 640, 1536
NC = 321

def bf16_bits(x):
    x = np.ascontiguousarray(x, dtype=np.float32)
    u = x.view(np.uint32).astype(np.uint64)
    r = ((u + 0x7FFF + ((u >> 16) & 1)) >> 16).astype(np.uint16)
    return r
def bf16_val(b):
    return (b.astype(np.uint32) << 16).view(np.float32)
def rb(x):
    return bf16_val(bf16_bits(x))

def s_of_p(p):
    s2hi = p >> 10; s1hi = (p >> 6) & 15; s2lo = (p >> 2) & 15; s1lo = p & 3
    return 32 * (4 * s1hi + s1lo) + 16 * s2hi + s2lo
P2S = np.array([s_of_p(p) for p in range(S)])

def al(x): return (x + 4095) & ~4095
XN_OFF = 0;                      XN_SZ = 64 * 40960
WGU_OFF = al(XN_OFF + XN_SZ);    WGU_SZ = 16 * 40 * 6 * 1024
WD_OFF = al(WGU_OFF + WGU_SZ);   WD_SZ = 8 * 48 * 5 * 1024
H_OFF = al(WD_OFF + WD_SZ);      H_SZ = 32 * 48 * 4 * 1024
X1_OFF = al(H_OFF + H_SZ);       X1_SZ = NC * 8192
WT_OFF = al(X1_OFF + X1_SZ);     WT_SZ = NC * 8192
Y1_OFF = al(WT_OFF + WT_SZ);     Y1_SZ = NC * 8192
P_OFF = al(Y1_OFF + Y1_SZ);      P_SZ = S * D * 2
WS_USED = al(P_OFF + P_SZ)

lane = np.arange(64)
jj = np.arange(8)

def frag16(fn):
    return fn((lane & 15)[:, None], (lane >> 4)[:, None], jj[None, :])

def table_R():
    T = np.zeros((6, 2, 5, 64, 8))
    for g in range(6):
        for t in range(5):
            def ang(n, kg, j): return 2 * np.pi * (((16 * g + n) * (32 * t + 8 * kg + j)) % 160) / 160
            valid = frag16(lambda n, kg, j: (16 * g + n <= 80) + 0 * j)
            T[g, 0, t] = frag16(lambda n, kg, j: np.cos(ang(n, kg, j))) * valid
            T[g, 1, t] = frag16(lambda n, kg, j: -np.sin(ang(n, kg, j))) * valid
    return T
def table_I():
    T = np.zeros((10, 6, 64, 8))
    sc = 1.0 / (640.0 * 2048.0)
    for nt in range(10):
        for t in range(6):
            def f(n, kg, j):
                kp = 16 * t + 4 * kg + (j >> 1); part = j & 1; jc = 16 * nt + n
                a = 2 * np.pi * ((kp * jc) % 160) / 160
                coef = np.where((kp == 0) | (kp == 80), 1.0, 2.0) * (kp <= 80)
                v = np.where(part == 0, np.cos(a), -np.sin(a))
                v = np.where((part == 1) & ((kp == 0) | (kp == 80)), 0.0, v)
                return v * coef * sc
            T[nt, t] = frag16(f)
    return T
def table_B1():
    T = np.zeros((4, 2, 4, 64, 8))
    for w in range(4):
        for t in range(4):
            def ang(n, kg, j): return 2 * np.pi * (((16 * w + n) * (16 * t + 4 * kg + (j >> 1))) % 64) / 64
            T[w, 0, t] = frag16(lambda n, kg, j: np.where((j & 1) == 0, np.cos(ang(n, kg, j)), np.sin(ang(n, kg, j))))
            T[w, 1, t] = frag16(lambda n, kg, j: np.where((j & 1) == 0, -np.sin(ang(n, kg, j)), np.cos(ang(n, kg, j))))
    return T
def table_A3():
    T = np.zeros((4, 2, 64, 8))
    for a in range(4):
        for u in range(2):
            def f(n, kg, j):
                g = n >> 2; c = n & 3
                idx = 16 * (a >> 1) + 4 * g + 2 * (a & 1) + (c >> 1); po = c & 1
                oth = 16 * u + 4 * kg + (j >> 1); pi = j & 1
                an = 2 * np.pi * ((idx * oth) % 32) / 32
                return np.where(po == 0, np.where(pi == 0, np.cos(an), np.sin(an)),
                                np.where(pi == 0, -np.sin(an), np.cos(an)))
            T[a, u] = frag16(f)
    return T

def fslot(T, kg, j):
    return 32 * T + 16 * (kg >> 1) + 8 * (j >> 2) + 4 * (kg & 1) + (j & 3)

def expected(x, wr, wi, wg, wu, wd):
    x = x.astype(np.float64)
    m = x.mean(1, keepdims=True); v = x.var(1, keepdims=True)
    xn = rb((x - m) / np.sqrt(v + 1e-5)).astype(np.float64)
    xp = xn[P2S]
    E = {}
    E['XN'] = xp.reshape(64, 32, 80, 8).transpose(0, 2, 1, 3).reshape(-1)
    W = np.zeros((16, 40, 6, 64, 8))
    row = lane & 31; h = lane >> 5
    for ag in range(96):
        for t in range(40):
            k = 16 * t + 8 * h[:, None] + jj[None, :]
            col = 16 * ag + (row & 15)[:, None]
            W[ag // 6, t, ag % 6] = np.where((row < 16)[:, None], wg[k, col], wu[k, col])
    E['WGU'] = W.reshape(-1)
    Wd = np.zeros((8, 48, 5, 64, 8))
    for dtg in range(40):
        for T in range(48):
            Wd[dtg // 5, T, dtg % 5] = frag16(lambda n, kg, j: wd[fslot(T, kg, j), 16 * dtg + n])
    E['WD'] = Wd.reshape(-1)
    hh = rb((xp @ wg) * (xp @ wu)).astype(np.float64)
    H = np.zeros((32, 48, 4, 64, 8))
    for pt in range(128):
        for T in range(48):
            H[pt // 4, T, pt % 4] = frag16(lambda n, kg, j: hh[16 * pt + n, fslot(T, kg, j)])
    E['H'] = H.reshape(-1)
    X1 = np.fft.rfft(xn, axis=1)
    def cplx(a): return np.stack([a.real, a.imag], -1).reshape(-1)
    E['X1'] = cplx(X1[P2S].T)
    Wc = wr + 1j * wi
    E['WT'] = cplx(Wc.T)
    Y1 = np.fft.ifft(np.fft.fft(X1, axis=0) * Wc, axis=0) * 2048
    E['Y1'] = cplx(Y1[P2S].T)
    Pm = hh @ wd
    E['P'] = Pm.reshape(-1)
    y = np.fft.irfft(Y1 / 2048, n=640, axis=1)
    out = x + y
    out[P2S] += Pm
    E['out'] = out.reshape(-1)
    return E
OFFS = dict(XN=(XN_OFF, XN_SZ), WGU=(WGU_OFF, WGU_SZ), WD=(WD_OFF, WD_SZ), H=(H_OFF, H_SZ),
            X1=(X1_OFF, X1_SZ), WT=(WT_OFF, WT_SZ), Y1=(Y1_OFF, Y1_SZ), P=(P_OFF, P_SZ))
```

```python
import sys, numpy as np
sys.path.insert(0, 'gen')
from asm import Asm, vr
import model as M
OOB = 0x40000000
TR_OFF = 0; TI_OFF = 60 * 1024; B1_OFF = TI_OFF + 60 * 1024; A3_OFF = B1_OFF + 32 * 1024; TBL_SZ = A3_OFF + 8 * 1024

def prologue(a, name, ngrid):
    a.raw('.p2align 8\n.globl %s\n.type %s,@function\n%s:' % (name, name, name))
    a.hist = []; a.nv = 1; a.maxv = 1
    a(f'''
    s_cmp_ge_u32 s2, {ngrid}
    s_cbranch_scc1 L_end_{name}
    s_load_dwordx4 s[4:7], s[0:1], 0
    s_load_dwordx2 s[8:9], s[0:1], 16
    s_load_dwordx4 s[12:15], s[0:1], 32
    s_load_dwordx4 s[16:19], s[0:1], 48
    s_load_dwordx4 s[20:23], s[0:1], 64
    s_getpc_b64 s[32:33]
    s_add_u32 s32, s32, tables@rel32@lo+4
    s_addc_u32 s33, s33, tables@rel32@hi+12
    s_mov_b32 s34, {TBL_SZ}
    s_mov_b32 s35, 0x00020000
    v_lshrrev_b32 v1, 6, v0
    v_readfirstlane_b32 s3, v1
    v_and_b32 v1, 63, v0
    s_waitcnt lgkmcnt(0)
    s_mov_b32 s24, s22
    s_mov_b32 s25, s23
    s_mov_b32 s26, {M.WS_USED}
    s_mov_b32 s27, 0x00020000
    ''')
    a.nv = 2
def srd(a, d, lo, size):
    a(f's_mov_b32 s{d}, s{lo}\ns_mov_b32 s{d+1}, s{lo+1}\ns_mov_b32 s{d+2}, {size}\ns_mov_b32 s{d+3}, 0x00020000')
def epilogue(a, name, desc, nagpr=0):
    a.label(f'L_end_{name}', flush=False)
    a('s_endpgm')
    nv = (a.maxv + 3) // 4 * 4
    desc.append(f'''.p2align 6
.amdhsa_kernel {name}
  .amdhsa_next_free_vgpr {nv + nagpr}
  .amdhsa_next_free_sgpr 96
  .amdhsa_accum_offset {nv}
  .amdhsa_group_segment_fixed_size 0
  .amdhsa_kernarg_size 80
  .amdhsa_user_sgpr_count 2
  .amdhsa_user_sgpr_kernarg_segment_ptr 1
  .amdhsa_system_sgpr_workgroup_id_x 1
.end_amdhsa_kernel''')

def octet(a, sd):
    a(f's_and_b32 s{sd}, s2, 7\ns_lshl_b32 s{sd}, s{sd}, 5\ns_lshr_b32 s95, s2, 3\ns_add_u32 s{sd}, s{sd}, s95')

def twiddles3(a, vk, out, tmp, div):
    a(f'v_cvt_f32_u32 v{tmp}, v{vk}')
    for r in (1, 2, 3):
        c = np.float32(r / div).view(np.uint32)
        a(f'v_mul_f32 v{tmp+1}, 0x{c:08x}, v{tmp}')
        a(f'v_cos_f32 v{out+2*r-2}, v{tmp+1}\nv_sin_f32 v{out+2*r-1}, v{tmp+1}')

def reduce32(a, v, t):
    for r in (8, 4, 2, 1):
        a(f'v_add_f32_dpp v{v}, v{v}, v{v} row_ror:{r} row_mask:0xf bank_mask:0xf')
    a(f'v_mov_b32 v{t}, v{v}\nv_permlane16_swap_b32 v{v}, v{t}\nv_add_f32 v{v}, v{v}, v{t}')

KA_LDS = 16384 + 12288
def kernel_a(a, desc):
    name = 'prep_kernel'
    prologue(a, name, 256)
    srd(a, 28, 4, M.S * M.D * 2)
    octet(a, 40)
    xr = a.v(12); tA = 0; tB = 40; gu = a.v(16); wd = a.v(16)
    t0 = a.v(); t1 = a.v(); t2 = a.v(); t3 = a.v(); l5 = a.v(); hh = a.v(); n16 = a.v(); g4 = a.v(); l16 = a.v()
    a(f'''
    v_and_b32 v{l5}, 31, v1
    v_lshrrev_b32 v{hh}, 5, v1
    v_and_b32 v{n16}, 15, v1
    v_lshrrev_b32 v{g4}, 4, v1
    v_lshlrev_b32 v{l16}, 4, v1
    ; sbase = 128*((o>>3)&15) + 64*(w&1) + 16*(o>>7) + ((2o+(w>>1))&15)
    s_lshr_b32 s41, s40, 3
    s_and_b32 s41, s41, 15
    s_lshl_b32 s41, s41, 7
    s_and_b32 s42, s3, 1
    s_lshl_b32 s43, s42, 6
    s_add_u32 s41, s41, s43
    s_lshr_b32 s43, s40, 7
    s_lshl_b32 s43, s43, 4
    s_add_u32 s41, s41, s43
    s_lshr_b32 s44, s3, 1
    s_lshl_b32 s43, s40, 1
    s_add_u32 s43, s43, s44
    s_and_b32 s43, s43, 15
    s_add_u32 s41, s41, s43
    s_mul_i32 s41, s41, 1280
    v_mul_u32_u24 v{t0}, {32*1280}, v{hh}
    v_lshl_add_u32 v{t0}, v{l5}, 4, v{t0}
    v_mov_b32 v{t1}, {OOB}
    v_cmp_gt_u32 vcc, 16, v{l5}
    v_cndmask_b32 v{t1}, v{t1}, v{t0}, vcc
    buffer_load_dwordx4 {vr(xr,4)}, v{t0}, s[28:31], s41 offen
    buffer_load_dwordx4 {vr(xr+4,4)}, v{t0}, s[28:31], s41 offen offset:512
    buffer_load_dwordx4 {vr(xr+8,4)}, v{t1}, s[28:31], s41 offen offset:1024
    s_mul_i32 s45, s3, 10240
    s_mul_i32 s46, s44, 10240
    s_add_u32 s46, s46, {TR_OFF + 4*10240}
    ''')
    for (tb, sb) in ((tA, 45), (tB, 46)):
        for i in range(10):
            if i % 4 == 0 and i: a(f's_add_u32 s{sb}, s{sb}, 4096')
            a(f'buffer_load_dwordx4 {vr(tb+4*i,4,"a")}, v{l16}, s[32:35], s{sb} offen offset:{(i%4)*1024}')
    a(f'''
    s_cmp_lt_u32 s3, 2
    s_cselect_b32 s36, s6, s8
    s_cselect_b32 s37, s7, s9
    s_mov_b32 s38, {2048*642}
    s_mov_b32 s39, 0x00020000
    s_mul_i32 s47, s40, 5136
    s_mul_i32 s48, s42, 3072
    s_add_u32 s47, s47, s48
    s_mul_i32 s48, s3, 3072
    s_add_u32 s48, s48, 16384
    s_mov_b32 m0, s48
    buffer_load_dwordx4 v{l16}, s[36:39], s47 offen lds
    buffer_load_dwordx4 v{l16}, s[36:39], s47 offen offset:1024 lds
    buffer_load_dwordx4 v{l16}, s[36:39], s47 offen offset:2048 lds
    s_lshl_b32 s49, s2, 2
    s_add_u32 s49, s49, s3
    s_mul_i32 s50, s49, 43691
    s_lshr_b32 s50, s50, 18
    s_mul_i32 s51, s50, 6
    s_sub_u32 s51, s49, s51
    s_and_b32 s52, s50, 1
    s_lshr_b32 s53, s50, 1
    s_cmp_eq_u32 s52, 0
    s_cselect_b32 s56, s12, s14
    s_cselect_b32 s57, s13, s15
    s_mov_b32 s58, {M.D*M.F*2}
    s_mov_b32 s59, 0x00020000
    s_mul_i32 s54, s53, {8*3072}
    s_lshl_b32 s55, s51, 9
    s_add_u32 s54, s54, s55
    s_cmp_lt_u32 s2, 240
    s_cselect_b32 s54, s54, {OOB}
    v_lshlrev_b32 v{t2}, 3, v1
    ''')
    for i in range(8):
        if i % 2 == 0 and i: a('s_add_u32 s54, s54, 6144')
        a(f'buffer_load_dwordx2 {vr(gu+2*i,2)}, v{t2}, s[56:59], s54 offen offset:{(i%2)*3072}')
    Hh = a.v(); sg = a.v(); dq = a.v(); kg = a.v(); Tt = a.v(); wdst = a.v(); gust = a.v()
    srd(a, 60, 16, M.D * M.F * 2)
    a(f'''
    s_lshl_b32 s55, s2, 2
    s_lshl_b32 s64, s3, 1
    s_add_u32 s55, s55, s64
    v_add_u32 v{Hh}, s55, v{hh}
    v_mul_u32_u24 v{sg}, 52429, v{Hh}
    v_lshrrev_b32 v{sg}, 18, v{sg}
    v_mul_u32_u24 v{t0}, 5, v{sg}
    v_sub_u32 v{t0}, v{Hh}, v{t0}
    v_lshl_add_u32 v{dq}, v{t0}, 5, v{l5}
    v_lshrrev_b32 v{Tt}, 2, v{sg}
    v_and_b32 v{kg}, 3, v{sg}
    v_lshrrev_b32 v{t0}, 1, v{kg}
    v_lshlrev_b32 v{t0}, 4, v{t0}
    v_lshl_add_u32 v{t0}, v{Tt}, 5, v{t0}
    v_and_b32 v{t1}, 1, v{kg}
    v_lshl_add_u32 v{t0}, v{t1}, 2, v{t0}
    v_mul_u32_u24 v{t0}, 1280, v{t0}
    v_lshl_add_u32 v{t0}, v{dq}, 3, v{t0}
    s_cmp_lt_u32 s2, 240
    s_cselect_b32 s64, 0, {OOB}
    s_cmp_lt_u32 s3, 2
    s_cselect_b32 s64, s64, {OOB}
    s_add_u32 s65, s64, {8*1280}
    ''')
    for i in range(8):
        a(f'buffer_load_dwordx2 {vr(wd+2*i,2)}, v{t0}, s[60:63], s{64+i//4} offen offset:{(i%4)*1280}')
    a(f'''
    ; WD dest: dtg=dq>>2, di=dtg/5, dt=dtg%5 ; ((di*48+T)*5+dt)*1024 + (kg*16+4*(dq&3))*16
    v_lshrrev_b32 v{t0}, 2, v{dq}
    v_mul_u32_u24 v{t1}, 52, v{t0}
    v_lshrrev_b32 v{t1}, 8, v{t1}
    v_mul_u32_u24 v{t2}, 5, v{t1}
    v_sub_u32 v{t0}, v{t0}, v{t2}
    v_mul_u32_u24 v{t1}, 48, v{t1}
    v_add_u32 v{t1}, v{t1}, v{Tt}
    v_mul_u32_u24 v{t1}, 5, v{t1}
    v_add_u32 v{t0}, v{t0}, v{t1}
    v_lshlrev_b32 v{t0}, 10, v{t0}
    v_lshl_add_u32 v{t0}, v{kg}, 8, v{t0}
    v_and_b32 v{t1}, 3, v{dq}
    v_lshl_add_u32 v{wdst}, v{t1}, 6, v{t0}
    s_add_u32 s66, s64, {M.WD_OFF}
    ; WGU dest: ag=16*q6+(lane>>2); ((ag/6*40+t)*6+ag%6)*1024 + (h*32+16m+4(lane&3))*16
    v_lshrrev_b32 v{t0}, 2, v1
    s_lshl_b32 s55, s51, 4
    v_add_u32 v{t0}, s55, v{t0}
    v_mul_u32_u24 v{t1}, 43, v{t0}
    v_lshrrev_b32 v{t1}, 8, v{t1}
    v_mul_u32_u24 v{t2}, 6, v{t1}
    v_sub_u32 v{t0}, v{t0}, v{t2}
    v_mul_u32_u24 v{t1}, 240, v{t1}
    v_add_u32 v{t0}, v{t0}, v{t1}
    v_lshlrev_b32 v{t0}, 10, v{t0}
    v_and_b32 v{t1}, 3, v1
    v_lshl_add_u32 v{gust}, v{t1}, 6, v{t0}
    s_lshr_b32 s55, s53, 1
    s_mul_i32 s67, s55, 6144
    s_and_b32 s55, s53, 1
    s_lshl_b32 s55, s55, 9
    s_add_u32 s67, s67, s55
    s_lshl_b32 s55, s52, 8
    s_add_u32 s67, s67, s55
    s_add_u32 s67, s67, {M.WGU_OFF}
    s_cmp_lt_u32 s2, 240
    s_cselect_b32 s67, s67, {OOB}
    s_mov_b32 s68, 0x05040100
    s_mov_b32 s69, 0x07060302
    ''')
    twA = a.v(6); twB = a.v(6); kA = a.v(); kB = a.v(); pA = a.v(); mA = a.v(); pB = a.v(); mB = a.v()
    a(f'''
    s_lshl_b32 s55, s3, 4
    v_add_u32 v{kA}, s55, v{n16}
    s_lshl_b32 s55, s44, 4
    s_add_u32 s55, s55, 64
    v_add_u32 v{kB}, s55, v{n16}
    ''')
    twiddles3(a, kA, twA, t0, 640.0); twiddles3(a, kB, twB, t0, 640.0)
    a(f'''
    v_lshlrev_b32 v{t0}, 2, v{g4}
    v_lshl_add_u32 v{pA}, v{kA}, 13, v{t0}
    v_sub_u32 v{t1}, 80, v{kA}
    v_lshl_add_u32 v{mA}, v{t1}, 13, v{t0}
    s_lshl_b32 s55, s42, 4
    v_add_u32 v{t0}, s55, v{t0}
    v_lshl_add_u32 v{pB}, v{kB}, 13, v{t0}
    v_sub_u32 v{t1}, 80, v{kB}
    v_lshl_add_u32 v{mB}, v{t1}, 13, v{t0}
    v_mov_b32 v{t1}, {OOB}
    v_cmp_ge_u32 vcc, 80, v{kB}
    v_cndmask_b32 v{pB}, v{t1}, v{pB}, vcc
    v_cndmask_b32 v{mB}, v{t1}, v{mB}, vcc
    s_lshl_b32 s70, s40, 5
    s_add_u32 s70, s70, {M.X1_OFF}
    s_add_u32 s71, s70, {160*8192}
    s_add_u32 s72, s70, {240*8192}
    s_add_u32 s73, s70, {80*8192}
    ''')
    wa = a.v(8); xs = a.v(); xs2 = a.v(); ra = a.v(5); rb_ = a.v(5)
    a(f'''
    s_lshl_b32 s55, s42, 1
    v_add_u32 v{t0}, s55, v{hh}
    v_lshlrev_b32 v{t0}, 2, v{t0}
    s_lshl_b32 s55, s3, 1
    v_add_u32 v{t1}, s55, v{hh}
    v_lshlrev_b32 v{t2}, 11, v{t1}
    v_and_b32 v{t3}, 3, v{l5}
    v_lshl_add_u32 v{t2}, v{t3}, 2, v{t2}
    v_lshrrev_b32 v{t3}, 2, v{l5}
    v_xor_b32 v{t3}, v{t3}, v{t0}
    ''')
    for r in range(4):
        a(f'v_xor_b32 v{t0}, {r}, v{t3}\nv_lshl_add_u32 v{wa+r}, v{t0}, 4, v{t2}\nv_add_u32 v{wa+r}, {r*512}, v{wa+r}\nv_xor_b32 v{wa+4+r}, 128, v{wa+r}')
    a(f'''
    s_lshr_b32 s74, s40, 2
    s_mul_i32 s74, s74, 40960
    s_and_b32 s55, s40, 3
    s_lshl_b32 s55, s55, 7
    s_add_u32 s74, s74, s55
    s_add_u32 s74, s74, {M.XN_OFF}
    s_add_u32 s75, s74, {32*512}
    s_add_u32 s76, s74, {64*512}
    v_lshlrev_b32 v{xs}, 9, v{l5}
    v_lshl_add_u32 v{xs}, v{t1}, 4, v{xs}
    v_mov_b32 v{xs2}, {OOB}
    v_cmp_gt_u32 vcc, 16, v{l5}
    v_cndmask_b32 v{xs2}, v{xs2}, v{xs}, vcc
    s_lshl_b32 s55, s42, 13
    ''')
    for t in range(5):
        a(f'v_add_u32 v{t0}, {4*t}, v{g4}\nv_xor_b32 v{t0}, v{t0}, v{n16}\nv_lshlrev_b32 v{t0}, 4, v{t0}\nv_lshl_add_u32 v{ra+t}, v{n16}, 9, v{t0}\nv_add_u32 v{rb_+t}, s55, v{ra+t}')
    xf = a.v(24); pk = a.v(12); sm = a.v();
    a('s_waitcnt vmcnt(39)')
    for i in range(12):
        a(f'v_lshlrev_b32 v{xf+2*i}, 16, v{xr+i}\nv_and_b32 v{xf+2*i+1}, 0xffff0000, v{xr+i}')
    a(f'v_add_f32 v{sm}, v{xf}, v{xf+1}\nv_add_f32 v{t0}, v{xf+2}, v{xf+3}')
    for i in range(4, 24, 2):
        a(f'v_add_f32 v{sm}, v{sm}, v{xf+i}\nv_add_f32 v{t0}, v{t0}, v{xf+i+1}')
    a(f'v_add_f32 v{sm}, v{sm}, v{t0}')
    reduce32(a, sm, t0)
    c640 = np.float32(1 / 640).view(np.uint32)
    a(f'v_mul_f32 v{sm}, 0x{c640:08x}, v{sm}')
    for i in range(16): a(f'v_sub_f32 v{xf+i}, v{xf+i}, v{sm}')
    a('s_mov_b32 exec_lo, 0xffff\ns_mov_b32 exec_hi, 0xffff')
    for i in range(16, 24): a(f'v_sub_f32 v{xf+i}, v{xf+i}, v{sm}')
    a('s_mov_b64 exec, -1')
    a(f'v_mul_f32 v{sm}, v{xf}, v{xf}\nv_mul_f32 v{t0}, v{xf+1}, v{xf+1}')
    for i in range(2, 24, 2):
        a(f'v_fmac_f32 v{sm}, v{xf+i}, v{xf+i}\nv_fmac_f32 v{t0}, v{xf+i+1}, v{xf+i+1}')
    a(f'v_add_f32 v{sm}, v{sm}, v{t0}')
    reduce32(a, sm, t0)
    eps = np.float32(1e-5).view(np.uint32)
    a(f'v_mov_b32 v{t0}, 0x{eps:08x}\nv_fmac_f32 v{t0}, 0x{c640:08x}, v{sm}\nv_rsq_f32 v{sm}, v{t0}')
    for i in range(24): a(f'v_mul_f32 v{xf+i}, v{xf+i}, v{sm}')
    for i in range(3):
        for r in range(4):
            a(f'v_cvt_pk_bf16_f32 v{pk+4*i+r}, v{xf+8*i+r}, v{xf+8*i+4+r}')
    for i in range(3):
        if i == 2: a('s_mov_b32 exec_lo, 0xffff\ns_mov_b32 exec_hi, 0xffff')
        for r in range(4):
            a(f'ds_write_b32 v{wa + r + (4 if i == 1 else 0)}, v{pk+4*i+r} offset:{256 if i == 2 else 0}')
    a('s_mov_b64 exec, -1')
    for i in range(12): a(f'v_cvt_pk_bf16_f32 v{xr+i}, v{xf+2*i}, v{xf+2*i+1}')
    a(f'''
    buffer_store_dwordx4 {vr(xr,4)}, v{xs}, s[24:27], s74 offen
    buffer_store_dwordx4 {vr(xr+4,4)}, v{xs}, s[24:27], s75 offen
    buffer_store_dwordx4 {vr(xr+8,4)}, v{xs2}, s[24:27], s76 offen
    s_waitcnt vmcnt(19) lgkmcnt(0)
    s_barrier
    ''')
    f0 = a.v(20); f1 = a.v(20); f2 = xf
    for t in range(5): a(f'ds_read_b128 {vr(f0+4*t,4)}, v{ra+t}')
    for t in range(5): a(f'ds_read_b128 {vr(f1+4*t,4)}, v{ra+t} offset:8192')
    for t in range(5): a(f'ds_read_b128 {vr(f2+4*t,4)}, v{rb_+t}')
    po = pk
    po = a.v(16)
    a('s_waitcnt vmcnt(11)')
    for e in range(4):
        for i in range(4):
            a(f'v_perm_b32 v{po+4*e+i}, v{gu+4*i+2+(e>>1)}, v{gu+4*i+(e>>1)}, s{68+(e&1)}')
        a(f'buffer_store_dwordx4 {vr(po+4*e,4)}, v{gust}, s[24:27], s67 offen offset:{16*e}')
    acc = a.v(24)
    a('s_waitcnt lgkmcnt(0)')
    jobs = ((f0, tA), (f1, tA), (f2, tB))
    for t in range(5):
        for jn, (f, tb) in enumerate(jobs):
            for part in range(2):
                d = vr(acc + 8 * jn + 4 * part, 4)
                a(f'v_mfma_f32_16x16x32_bf16 {d}, {vr(f+4*t,4)}, {vr(tb+20*part+4*t,4,"a")}, {"0" if t == 0 else d}')
    a(f'v_lshlrev_b32 v{t3}, 1, v0')
    for i in range(8):
        a(f'ds_read_u16 v{gu+i}, v{t3} offset:{16384+642*i}\nds_read_u16 v{gu+8+i}, v{t3} offset:{16384+6144+642*i}')
    a('s_waitcnt vmcnt(7)')
    pw = f0
    for e in range(4):
        for i in range(4):
            a(f'v_perm_b32 v{pw+4*e+i}, v{wd+4*i+2+(e>>1)}, v{wd+4*i+(e>>1)}, s{68+(e&1)}')
        a(f'buffer_store_dwordx4 {vr(pw+4*e,4)}, v{wdst}, s[24:27], s66 offen offset:{16*e}')
    a(f'''
    s_lshl_b32 s77, s40, 5
    s_add_u32 s77, s77, {M.WT_OFF}
    s_add_u32 s78, s77, {256*8192}
    v_lshlrev_b32 v{t2}, 13, v0
    s_waitcnt lgkmcnt(0)
    ''')
    for i in range(8): a(f'v_lshl_or_b32 v{f1+i}, v{gu+8+i}, 16, v{gu+i}')
    for i in range(8):
        a(f'ds_read_u16 v{gu+i}, v{t3} offset:{16384+512+642*i}\nds_read_u16 v{gu+8+i}, v{t3} offset:{16384+6144+512+642*i}')
    a(f'buffer_store_dwordx4 {vr(f1,4)}, v{t2}, s[24:27], s77 offen\nbuffer_store_dwordx4 {vr(f1+4,4)}, v{t2}, s[24:27], s77 offen offset:16')
    bs = a.v(20)
    for jn in range(3):
        R = acc + 8 * jn; I = R + 4; tw = twA if jn < 2 else twB
        vp, vm = (pA, mA) if jn < 2 else (pB, mB); off = 16 if jn == 1 else 0
        b = bs if jn == 1 else xf
        for r in (1, 2, 3):
            c, s = tw + 2 * r - 2, tw + 2 * r - 1
            a(f'v_mul_f32 v{b+2*r}, v{R+r}, v{c}\nv_mul_f32 v{b+2*r+1}, v{I+r}, v{c}')
            a(f'v_fmac_f32 v{b+2*r}, v{I+r}, v{s}\nv_fma_f32 v{b+2*r+1}, -v{R+r}, v{s}, v{b+2*r+1}')
        e0, e1, o0, o1, q = b + 8, b + 10, b + 12, b + 14, b + 16
        a(f'''
        v_add_f32 v{e0}, v{R}, v{b+4}
        v_add_f32 v{e0+1}, v{I}, v{b+5}
        v_sub_f32 v{e1}, v{R}, v{b+4}
        v_sub_f32 v{e1+1}, v{I}, v{b+5}
        v_add_f32 v{o0}, v{b+2}, v{b+6}
        v_add_f32 v{o0+1}, v{b+3}, v{b+7}
        v_sub_f32 v{o1}, v{b+2}, v{b+6}
        v_sub_f32 v{o1+1}, v{b+3}, v{b+7}
        v_add_f32 v{b}, v{e0}, v{o0}
        v_add_f32 v{b+1}, v{e0+1}, v{o0+1}
        v_add_f32 v{b+2}, v{e1}, v{o1+1}
        v_sub_f32 v{b+3}, v{e1+1}, v{o1}
        v_sub_f32 v{b+4}, v{e0}, v{o0}
        v_sub_f32 v{b+5}, v{o0+1}, v{e0+1}
        v_sub_f32 v{b+6}, v{e1}, v{o1+1}
        v_add_f32 v{b+7}, v{e1+1}, v{o1}
        v_cvt_pk_bf16_f32 v{q}, v{b}, v{b+1}
        v_cvt_pk_bf16_f32 v{q+1}, v{b+2}, v{b+3}
        v_cvt_pk_bf16_f32 v{q+2}, v{b+4}, v{b+5}
        v_cvt_pk_bf16_f32 v{q+3}, v{b+6}, -v{b+7}
        buffer_store_dword v{q+3}, v{vm}, s[24:27], s73 offen offset:{off}
        buffer_store_dword v{q+2}, v{vm}, s[24:27], s72 offen offset:{off}
        buffer_store_dword v{q}, v{vp}, s[24:27], s70 offen offset:{off}
        buffer_store_dword v{q+1}, v{vp}, s[24:27], s71 offen offset:{off}
        ''')
    a(f'''
    v_mov_b32 v{t1}, {OOB}
    v_cmp_gt_u32 vcc, 65, v0
    v_cndmask_b32 v{t2}, v{t1}, v{t2}, vcc
    s_waitcnt lgkmcnt(0)
    ''')
    for i in range(8): a(f'v_lshl_or_b32 v{f1+8+i}, v{gu+8+i}, 16, v{gu+i}')
    a(f'buffer_store_dwordx4 {vr(f1+8,4)}, v{t2}, s[24:27], s78 offen\nbuffer_store_dwordx4 {vr(f1+12,4)}, v{t2}, s[24:27], s78 offen offset:16')
    epilogue(a, name, desc, nagpr=80)
    return name

class FRegs: pass
def F_setup(a, ebase):
    f = FRegs()
    f.B1 = a.v(32); f.A3 = a.v(32); f.X = a.v(32); f.W = a.v(8); f.tw = a.v(16)
    f.acc = a.v(16); f.pk = a.v(8); f.t = a.v(8); f.wa = a.v(4); f.ra = a.v(4); f.wo = a.v(); f.l16 = a.v()
    f.n16 = a.v(); f.g4 = a.v(); f.k1 = a.v()
    a(f'''
    v_lshlrev_b32 v{f.l16}, 4, v1
    v_and_b32 v{f.n16}, 15, v1
    v_lshrrev_b32 v{f.g4}, 4, v1
    s_lshl_b32 s80, s3, 4
    v_add_u32 v{f.k1}, s80, v{f.n16}
    v_lshlrev_b32 v{f.wo}, 2, v{f.k1}
    v_lshl_add_u32 v{f.wo}, v{f.g4}, 10, v{f.wo}
    ''')
    f.ebase = ebase
    return f
def F_consts(a, f):
    a(f's_lshl_b32 s80, s3, 13\ns_add_u32 s80, s80, {B1_OFF}\ns_add_u32 s81, s80, 4096\ns_mov_b32 s82, {A3_OFF}\ns_mov_b32 s83, {A3_OFF+4096}')
    for i in range(8): a(f'buffer_load_dwordx4 {vr(f.B1+4*i,4)}, v{f.l16}, s[32:35], s{80+i//4} offen offset:{(i%4)*1024}')
    for i in range(8): a(f'buffer_load_dwordx4 {vr(f.A3+4*i,4)}, v{f.l16}, s[32:35], s{82+i//4} offen offset:{(i%4)*1024}')
def F_loads(a, f, sc):
    a(f'''
    s_lshl_b32 s84, s{sc}, 13
    s_add_u32 s85, s84, {M.X1_OFF}
    s_add_u32 s86, s85, 4096
    s_add_u32 s87, s84, {M.WT_OFF}
    s_add_u32 s88, s87, 4096
    ''')
    for i in range(8): a(f'buffer_load_dwordx4 {vr(f.X+4*i,4)}, v{f.l16}, s[24:27], s{85+i//4} offen offset:{(i%4)*1024}')
    for i in range(8): a(f'buffer_load_dword v{f.W+i}, v{f.wo}, s[24:27], s{87+i//4} offen offset:{(i%4)*256}')
def F_prep(a, f):
    t = f.t
    c = np.float32(1 / 2048).view(np.uint32)
    a(f'v_cvt_f32_u32 v{t}, v{f.k1}\nv_mul_f32 v{t}, 0x{c:08x}, v{t}\nv_lshlrev_b32 v{t+1}, 2, v{f.g4}')
    for i in range(8):
        u, cc = i >> 2, i & 3
        a(f'v_add_u32 v{t+2}, {16*u+cc}, v{t+1}\nv_cvt_f32_u32 v{t+2}, v{t+2}\nv_mul_f32 v{t+2}, v{t+2}, v{t}')
        a(f'v_cos_f32 v{f.tw+2*i}, v{t+2}\nv_sin_f32 v{f.tw+2*i+1}, v{t+2}')
    a(f'v_lshrrev_b32 v{t+2}, 2, v{f.k1}\nv_and_b32 v{t+3}, 3, v{f.k1}\nv_lshlrev_b32 v{t+3}, 2, v{t+3}\nv_add_u32 v{t+3}, {f.ebase}, v{t+3}')
    for cc in range(4):
        a(f'v_add_u32 v{t+4}, {cc}, v{t+1}\nv_xor_b32 v{t+5}, v{t+2}, v{t+4}\nv_lshl_add_u32 v{t+5}, v{t+5}, 4, v{t+3}\nv_lshl_add_u32 v{f.wa+cc}, v{t+4}, 8, v{t+5}')
    a(f'v_lshlrev_b32 v{t+3}, 8, v{f.n16}\nv_add_u32 v{t+3}, {f.ebase}, v{t+3}')
    for tt in range(4):
        a(f'v_add_u32 v{t+4}, {4*tt}, v{f.g4}\nv_xor_b32 v{t+4}, v{t+4}, v{f.n16}\nv_lshl_add_u32 v{f.ra+tt}, v{t+4}, 4, v{t+3}')
def cmul_tw(a, f, zr, zi, i, dst):
    c, s = f.tw + 2 * i, f.tw + 2 * i + 1; t = f.t + 2 * (i & 3)
    a(f'v_mul_f32 v{t}, v{zr}, v{c}\nv_mul_f32 v{t+1}, v{zi}, v{c}\nv_fmac_f32 v{t}, v{zi}, v{s}\nv_fma_f32 v{t+1}, -v{zr}, v{s}, v{t+1}\nv_cvt_pk_bf16_f32 v{dst}, v{t}, v{t+1}')
def F_compute(a, f, sc, after, eoff):
    acc, pk = f.acc, f.pk
    a(f's_waitcnt vmcnt({after+8})')
    for t in range(4):
        for u in range(2):
            for part in range(2):
                d = vr(acc + 8 * u + 4 * part, 4)
                a(f'v_mfma_f32_16x16x32_bf16 {d}, {vr(f.X+16*u+4*t,4)}, {vr(f.B1+16*part+4*t,4)}, {"0" if t == 0 else d}')
    for i in range(8):
        u, c = i >> 2, i & 3
        cmul_tw(a, f, acc + 8 * u + c, acc + 8 * u + 4 + c, i, pk + i)
    for u in range(2):
        for aa in range(4):
            d = vr(acc + 4 * aa, 4)
            a(f'v_mfma_f32_16x16x32_bf16 {d}, {vr(f.A3+8*aa+4*u,4)}, {vr(pk+4*u,4)}, {"0" if u == 0 else d}')
    a(f's_waitcnt vmcnt({after})')
    wu = f.X
    for i in range(8): a(f'v_lshlrev_b32 v{wu+2*i}, 16, v{f.W+i}\nv_and_b32 v{wu+2*i+1}, 0xffff0000, v{f.W+i}')
    pk2 = f.X + 16
    for i in range(8):
        zr, zi = acc + 2 * i, acc + 2 * i + 1; wr, wi = wu + 2 * i, wu + 2 * i + 1; t = f.t + 2 * (i & 3)
        a(f'v_mul_f32 v{t}, v{zr}, v{wr}\nv_mul_f32 v{t+1}, v{zr}, v{wi}\nv_fma_f32 v{t}, -v{zi}, v{wi}, v{t}\nv_fmac_f32 v{t+1}, v{zi}, v{wr}\nv_cvt_pk_bf16_f32 v{pk2+i}, v{t}, -v{t+1}')
    for u in range(2):
        for aa in range(4):
            d = vr(acc + 4 * aa, 4)
            a(f'v_mfma_f32_16x16x32_bf16 {d}, {vr(f.A3+8*aa+4*u,4)}, {vr(pk2+4*u,4)}, {"0" if u == 0 else d}')
    for i in range(8):
        cmul_tw(a, f, acc + 2 * i, acc + 2 * i + 1, i, pk + i)
        a(f'ds_write_b32 v{f.wa+(i&3)}, v{pk+i} offset:{eoff+4096*(i>>2)}')
    a('s_waitcnt lgkmcnt(0)\ns_barrier')
    for t in range(4):
        for u in range(2):
            a(f'ds_read_b128 {vr(f.X+16*u+4*t,4)}, v{f.ra+t} offset:{eoff+4096*u}')
    for t in range(4):
        a(f's_waitcnt lgkmcnt({6-2*t})')
        for u in range(2):
            for po in range(2):
                d = vr(acc + 8 * u + 4 * po, 4)
                a(f'v_mfma_f32_16x16x32_bf16 {d}, {vr(f.B1+16*po+4*t,4)}, {vr(f.X+16*u+4*t,4)}, {"0" if t == 0 else d}')
    a(f's_lshl_b32 s84, s{sc}, 13\ns_lshl_b32 s85, s3, 10\ns_add_u32 s84, s84, s85\ns_add_u32 s84, s84, {M.Y1_OFF}\ns_add_u32 s85, s84, 4096')
    for u in range(2):
        for c in range(4): a(f'v_cvt_pk_bf16_f32 v{pk+4*u+c}, v{acc+8*u+c}, -v{acc+8*u+4+c}')
        a(f'buffer_store_dwordx4 {vr(pk+4*u,4)}, v{f.l16}, s[24:27], s{84+u} offen')

SLOT = 40960
KB_LDS = 3 * SLOT + 16384
def G_dma(a, l16, slot):
    g = []
    g.append(f's_add_u32 m0, s44, {slot*SLOT}\nbuffer_load_dwordx4 v{l16}, s[24:27], s41 offen lds')
    for i in (1, 2, 3): g.append(f'buffer_load_dwordx4 v{l16}, s[24:27], s41 offen offset:{i*1024} lds')
    g.append(f's_add_u32 m0, s44, {slot*SLOT+4096}\nbuffer_load_dwordx4 v{l16}, s[24:27], s42 offen lds')
    g.append(f'buffer_load_dwordx4 v{l16}, s[24:27], s42 offen offset:1024 lds')
    g.append(f's_add_u32 m0, s45, {slot*SLOT}\nbuffer_load_dwordx4 v{l16}, s[24:27], s43 offen lds')
    for i in (1, 2): g.append(f'buffer_load_dwordx4 v{l16}, s[24:27], s43 offen offset:{i*1024} lds')
    g.append(f'buffer_load_dwordx4 v{l16}, s[24:27], s43 offen offset:3072 lds\ns_add_u32 s41, s41, 24576\ns_add_u32 s42, s42, 24576\ns_add_u32 s43, s43, 4096')
    return g
def kernel_b(a, desc):
    name = 'gateup_kernel'
    prologue(a, name, 256)
    f = F_setup(a, 3 * SLOT)
    a('s_mov_b32 s40, s2')
    F_loads(a, f, 40); F_consts(a, f)
    a(f'''
    s_and_b32 s46, s2, 1
    s_lshl_b32 s46, s46, 3
    s_bfe_u32 s47, s2, 0x30003
    s_add_u32 s46, s46, s47
    s_bfe_u32 s47, s2, 0x20001
    s_lshl_b32 s47, s47, 2
    s_lshr_b32 s48, s2, 6
    s_add_u32 s47, s47, s48
    s_mul_i32 s41, s47, {40*6144}
    s_mul_i32 s44, s3, 6144
    s_add_u32 s41, s41, s44
    s_add_u32 s41, s41, {M.WGU_OFF}
    s_add_u32 s42, s41, 4096
    s_lshl_b32 s43, s46, 2
    s_add_u32 s43, s43, s3
    s_mul_i32 s43, s43, 40960
    s_add_u32 s43, s43, {M.XN_OFF}
    s_lshl_b32 s45, s3, 12
    s_add_u32 s45, s45, 24576
    ''')
    for st in range(3):
        for g in G_dma(a, f.l16, st): a(g)
    F_prep(a, f)
    a('s_waitcnt vmcnt(30)')
    F_compute(a, f, 40, 30, 0)
    a('s_add_u32 s40, s2, 256\ns_cmp_ge_u32 s40, 321\ns_cbranch_scc1 L_g_start')
    F_loads(a, f, 40)
    F_compute(a, f, 40, 0, 8192)
    a.label('L_g_start')
    l16 = f.l16
    a.nv = 2
    acc = a.v(96, 4); fr = [a.v(20), a.v(20)]; vA = a.v(3); vB = a.v(3); l16n = a.v(); t0 = a.v(); t1 = a.v()
    assert l16n != l16 and not (acc <= l16 < t1 + 1 and l16 != l16n) or True
    a(f'v_lshlrev_b32 v{l16n}, 4, v1'); l16 = l16n
    a(f'''
    s_and_b32 s50, s3, 1
    s_lshr_b32 s51, s3, 1
    s_mul_i32 s52, s50, 3072
    s_lshl_b32 s53, s51, 13
    s_add_u32 s53, s53, 24576
    ''')
    for sl in range(3):
        a(f'v_add_u32 v{vA+sl}, s52, v{l16}\nv_add_u32 v{vB+sl}, s53, v{l16}')
        if sl: a(f'v_add_u32 v{vA+sl}, {sl*SLOT}, v{vA+sl}\nv_add_u32 v{vB+sl}, {sl*SLOT}, v{vB+sl}')
    def reads(n):
        st, t = n >> 2, n & 3; sl = st % 3; F = fr[n & 1]
        r = [f'ds_read_b128 {vr(F+12+4*i,4)}, v{vB+sl} offset:{i*4096+t*1024}' for i in range(2)]
        ra = [f'ds_read_b128 {vr(F+4*i,4)}, v{vA+sl} offset:{t*6144+i*1024}' for i in range(3)]
        return [ra[0], r[0], r[1], ra[1], ra[2]]
    a('s_waitcnt vmcnt(22)\ns_barrier')
    for r in reads(0): a(r)
    pend = []
    for n in range(40):
        st, t = n >> 2, n & 3; F = fr[n & 1]
        fill = []
        nxt = reads(n + 1) if n < 39 else []
        mf = []
        for i in range(3):
            for b in range(2):
                d = vr(acc + 16 * (2 * i + b), 16)
                mf.append(f'v_mfma_f32_32x32x16_bf16 {d}, {vr(F+4*i,4)}, {vr(F+12+4*b,4)}, {"0" if n == 0 else d}')
        a('s_waitcnt lgkmcnt(0)')
        if t == 3 and st < 9:
            a(mf[0]); a(mf[1])
            extra = 2 if st == 0 else 0
            a(f's_waitcnt vmcnt({(10 if st < 8 else 0) + (extra if st == 0 else 0)})\ns_barrier')
            if st + 3 <= 9: pend = G_dma(a, l16, st % 3)
            gaps = [[], [nxt[0], nxt[1], nxt[2]], [nxt[3], nxt[4]], [], [], []]
            for k in (3, 4, 5):
                if pend: gaps[k].append(pend.pop(0))
            for k in range(1, 6):
                if k > 1: a(mf[k])
                for x in gaps[k]: a(x)
        else:
            gaps = [nxt[0:2], nxt[2:4], nxt[4:5], [], [], []]
            for k in (2, 3, 4, 5):
                if pend: gaps[k].append(pend.pop(0))
            for k in range(6):
                a(mf[k])
                for x in gaps[k]: a(x)
    assert not pend
    a(f'''
    s_lshl_b32 s54, s46, 1
    s_add_u32 s54, s54, s51
    s_mul_i32 s54, s54, 196608
    s_add_u32 s54, s54, {M.H_OFF}
    s_mul_i32 s55, s47, 6
    s_mul_i32 s56, s50, 3
    s_add_u32 s55, s55, s56
    v_and_b32 v{t0}, 15, v1
    v_lshlrev_b32 v{t0}, 4, v{t0}
    v_bfe_u32 v{t1}, v1, 4, 1
    v_lshl_add_u32 v{t0}, v{t1}, 10, v{t0}
    v_lshrrev_b32 v{t1}, 5, v1
    v_lshl_add_u32 v{t0}, v{t1}, 8, v{t0}
    ''')
    for i in range(3):
        a(f's_add_u32 s56, s55, {i}\ns_lshr_b32 s57, s56, 1\ns_lshl_b32 s57, s57, 12\ns_and_b32 s56, s56, 1\ns_lshl_b32 s56, s56, 9\ns_add_u32 s57, s57, s56\ns_add_u32 s{58+i}, s57, s54')
    for i in range(3):
        for b in range(2):
            A = acc + 16 * (2 * i + b); o = fr[0] + 4 * ((2 * i + b) % 5) if (2*i+b) < 5 else fr[1]
            for r in range(8): a(f'v_mul_f32 v{A+r}, v{A+r}, v{A+8+r}')
            for r in range(4): a(f'v_cvt_pk_bf16_f32 v{o+r}, v{A+2*r}, v{A+2*r+1}')
            a(f'buffer_store_dwordx4 {vr(o,4)}, v{t0}, s[24:27], s{58+i} offen offset:{b*2048}')
    epilogue(a, name, desc)
    return name

KC_LDS = 4 * 15 * 1024
DEPTH = 7
def kernel_c(a, desc):
    name = 'down_kernel'
    prologue(a, name, 256)
    acc = a.v(80, 4); l16 = a.v(); l16b = a.v(); vb = a.v(4); vw = a.v(3); t0 = a.v(); t1 = a.v(); rd = a.v(20)
    a(f'''
    s_and_b32 s46, s2, 3
    s_lshl_b32 s46, s46, 3
    s_bfe_u32 s47, s2, 0x30003
    s_add_u32 s46, s46, s47
    s_bfe_u32 s47, s2, 0x10002
    s_lshl_b32 s47, s47, 2
    s_lshr_b32 s48, s2, 6
    s_add_u32 s47, s47, s48
    s_mul_i32 s41, s47, 48
    s_add_u32 s41, s41, s3
    s_mul_i32 s41, s41, 5120
    s_add_u32 s41, s41, {M.WD_OFF}
    s_mul_i32 s42, s46, 48
    s_add_u32 s42, s42, s3
    s_lshl_b32 s42, s42, 12
    s_add_u32 s42, s42, {M.H_OFF}
    v_lshlrev_b32 v{l16}, 4, v1
    v_add_u32 v{l16b}, 4096, v{l16}
    ''')
    for q in range(4):
        a(f's_add_u32 s50, s3, {q}\ns_and_b32 s50, s50, 3\ns_lshl_b32 s51, s50, 10\nv_add_u32 v{vb+q}, s51, v{l16}')
        if q: a(f's_mul_i32 s51, s50, 15360\ns_add_u32 s51, s51, {(q-1)*5120}\nv_add_u32 v{vw+q-1}, s51, v{l16}')
    def ld(i):
        B = 36 * (i % DEPTH)
        L = [f'buffer_load_dwordx4 {vr(B+4*k,4,"a")}, v{l16 if k < 4 else l16b}, s[24:27], s41 offen offset:{(k%4)*1024}' for k in range(5)]
        L += [f'buffer_load_dwordx4 {vr(B+20+4*k,4,"a")}, v{vb+k}, s[24:27], s42 offen' for k in range(4)]
        L[-1] += '\ns_add_u32 s41, s41, 20480\ns_add_u32 s42, s42, 16384'
        return L
    for i in range(DEPTH):
        for x in ld(i): a(x)
    for i in range(12):
        B = 36 * (i % DEPTH)
        a(f's_waitcnt vmcnt({9*(min(12, i+DEPTH)-i-1)})')
        L = ld(i + DEPTH) if i + DEPTH < 12 else []
        for dt in range(5):
            for q in range(4):
                d = vr(acc + 4 * (5 * q + dt), 4)
                a(f'v_mfma_f32_16x16x32_bf16 {d}, {vr(B+4*dt,4,"a")}, {vr(B+20+4*q,4,"a")}, {"0" if i == 0 else d}')
            if L: a(L[dt])
        for x in L[5:]: a(x)
    for q in range(1, 4):
        for dt in range(5): a(f'ds_write_b128 v{vw+q-1}, {vr(acc+4*(5*q+dt),4)} offset:{dt*1024}')
    a(f'''
    s_mul_i32 s51, s3, 15360
    v_add_u32 v{t0}, s51, v{l16}
    s_lshl_b32 s52, s46, 6
    s_lshl_b32 s53, s3, 4
    s_add_u32 s52, s52, s53
    s_mul_i32 s52, s52, 1280
    s_mul_i32 s53, s47, 160
    s_add_u32 s52, s52, s53
    s_add_u32 s52, s52, {M.P_OFF}
    v_and_b32 v{t1}, 15, v1
    v_mul_u32_u24 v{t1}, 1280, v{t1}
    v_lshrrev_b32 v{l16b}, 4, v1
    v_lshl_add_u32 v{t1}, v{l16b}, 3, v{t1}
    s_waitcnt lgkmcnt(0)
    s_barrier
    ''')
    for k in range(15): a(f'ds_read_b128 {vr(acc+20+4*k,4)}, v{t0} offset:{k*1024}')
    for dt in range(5):
        a(f's_waitcnt lgkmcnt({4-dt})')
        for q in range(3):
            for r in range(4): a(f'v_add_f32 v{acc+4*dt+r}, v{acc+4*dt+r}, v{acc+20+20*q+4*dt+r}')
        a(f'v_cvt_pk_bf16_f32 v{rd+2*dt}, v{acc+4*dt}, v{acc+4*dt+1}\nv_cvt_pk_bf16_f32 v{rd+2*dt+1}, v{acc+4*dt+2}, v{acc+4*dt+3}')
        a(f'buffer_store_dwordx2 {vr(rd+2*dt,2)}, v{t1}, s[24:27], s52 offen offset:{dt*32}')
    epilogue(a, name, desc, nagpr=36 * DEPTH)
    return name

KD_LDS = 16384
def kernel_d(a, desc):
    name = 'inv_kernel'
    prologue(a, name, 256)
    srd(a, 28, 4, M.S * M.D * 2); srd(a, 36, 18, M.S * M.D * 2)
    octet(a, 40)
    Y = a.v(16); tb = a.v(72); xv = a.v(10); pv = a.v(10)
    kp = a.v(); vp = a.v(); vm = a.v(); t0 = a.v(); t1 = a.v(); l16 = a.v(); n16 = a.v(); g4 = a.v(); xo = a.v(); po = a.v()
    a(f'''
    v_lshrrev_b32 v{kp}, 1, v0
    v_and_b32 v{t0}, 1, v0
    v_lshlrev_b32 v{t0}, 4, v{t0}
    v_lshl_add_u32 v{vp}, v{kp}, 13, v{t0}
    v_sub_u32 v{t1}, 80, v{kp}
    v_lshl_add_u32 v{vm}, v{t1}, 13, v{t0}
    v_mov_b32 v{t1}, {OOB}
    v_cmp_ge_u32 vcc, 80, v{kp}
    v_cndmask_b32 v{vp}, v{t1}, v{vp}, vcc
    v_cndmask_b32 v{vm}, v{t1}, v{vm}, vcc
    s_lshl_b32 s70, s40, 5
    s_add_u32 s70, s70, {M.Y1_OFF}
    s_add_u32 s71, s70, {160*8192}
    s_add_u32 s72, s70, {240*8192}
    s_add_u32 s73, s70, {80*8192}
    buffer_load_dwordx4 {vr(Y,4)}, v{vp}, s[24:27], s70 offen
    buffer_load_dwordx4 {vr(Y+4,4)}, v{vp}, s[24:27], s71 offen
    buffer_load_dwordx4 {vr(Y+8,4)}, v{vm}, s[24:27], s72 offen
    buffer_load_dwordx4 {vr(Y+12,4)}, v{vm}, s[24:27], s73 offen
    v_lshlrev_b32 v{l16}, 4, v1
    v_and_b32 v{n16}, 15, v1
    v_lshrrev_b32 v{g4}, 4, v1
    s_and_b32 s42, s3, 1
    s_lshr_b32 s44, s3, 1
    s_mul_i32 s45, s3, 12288
    s_add_u32 s45, s45, {TI_OFF}
    s_mul_i32 s46, s44, 6144
    s_add_u32 s46, s46, {TI_OFF + 8*6144}
    ''')
    for i in range(12):
        if i % 4 == 0 and i: a('s_add_u32 s45, s45, 4096')
        a(f'buffer_load_dwordx4 {vr(tb+4*i,4)}, v{l16}, s[32:35], s45 offen offset:{(i%4)*1024}')
    for i in range(6):
        if i == 4: a('s_add_u32 s46, s46, 4096')
        a(f'buffer_load_dwordx4 {vr(tb+48+4*i,4)}, v{l16}, s[32:35], s46 offen offset:{(i%4)*1024}')
    a(f'''
    s_lshr_b32 s41, s40, 3
    s_and_b32 s41, s41, 15
    s_lshl_b32 s41, s41, 7
    s_lshr_b32 s43, s40, 7
    s_lshl_b32 s43, s43, 4
    s_add_u32 s41, s41, s43
    s_lshl_b32 s43, s40, 1
    s_and_b32 s43, s43, 15
    s_add_u32 s41, s41, s43
    s_mul_i32 s41, s41, 1280
    s_lshl_b32 s47, s3, 8
    s_add_u32 s50, s41, s47
    s_lshl_b32 s48, s44, 7
    s_add_u32 s48, s48, 1024
    s_mul_i32 s49, s42, 1280
    s_add_u32 s51, s41, s48
    s_add_u32 s51, s51, s49
    s_mul_i32 s52, s40, {8*1280}
    s_add_u32 s52, s52, {M.P_OFF}
    s_add_u32 s53, s52, s48
    s_add_u32 s52, s52, s47
    s_add_u32 s54, s52, {4*1280}
    s_mul_i32 s49, s42, {4*1280}
    s_add_u32 s53, s53, s49
    v_lshlrev_b32 v{t0}, 3, v{n16}
    v_mul_u32_u24 v{xo}, {32*1280}, v{g4}
    v_add_u32 v{xo}, v{xo}, v{t0}
    v_mul_u32_u24 v{po}, 1280, v{g4}
    v_add_u32 v{po}, v{po}, v{t0}
    ''')
    xa = [(50, 0), (50, 1280), (50, 128), (50, 1280 + 128), (51, 0)]
    pa = [(52, 0), (54, 0), (52, 128), (54, 128), (53, 0)]
    for jn in range(5):
        a(f'buffer_load_dwordx2 {vr(xv+2*jn,2)}, v{xo}, s[28:31], s{xa[jn][0]} offen offset:{xa[jn][1]}')
        a(f'buffer_load_dwordx2 {vr(pv+2*jn,2)}, v{po}, s[24:27], s{pa[jn][0]} offen offset:{pa[jn][1]}')
    tw = a.v(6); ra = a.v(6); rb_ = a.v(6); wb = a.v(); u = a.v(24); fa = a.v(72)
    twiddles3(a, kp, tw, t0, 640.0)
    a(f'''
    v_lshrrev_b32 v{t0}, 2, v{kp}
    v_lshlrev_b32 v{wb}, 4, v{t0}
    v_and_b32 v{t0}, 3, v{kp}
    v_lshl_add_u32 v{wb}, v{t0}, 2, v{wb}
    v_and_b32 v{t0}, 1, v0
    v_lshl_add_u32 v{wb}, v{t0}, 13, v{wb}
    s_lshl_b32 s55, s42, 13
    ''')
    for t in range(6):
        a(f'v_add_u32 v{t0}, {4*t}, v{g4}\nv_xor_b32 v{t0}, v{t0}, v{n16}\nv_lshlrev_b32 v{t0}, 4, v{t0}\nv_lshl_add_u32 v{ra+t}, v{n16}, 9, v{t0}\nv_add_u32 v{rb_+t}, s55, v{ra+t}')
    a('s_waitcnt vmcnt(28)')
    for i in range(4):
        for q in range(4): a(f'v_lshlrev_b32 v{u+2*q}, 16, v{Y+4*q+i}\nv_and_b32 v{u+2*q+1}, 0xffff0000, v{Y+4*q+i}')
        e0, e1, o0, o1 = u + 8, u + 10, u + 12, u + 14
        a(f'''
        v_add_f32 v{e0}, v{u}, v{u+4}
        v_sub_f32 v{e0+1}, v{u+1}, v{u+5}
        v_sub_f32 v{e1}, v{u}, v{u+4}
        v_add_f32 v{e1+1}, v{u+1}, v{u+5}
        v_add_f32 v{o0}, v{u+2}, v{u+6}
        v_sub_f32 v{o0+1}, v{u+3}, v{u+7}
        v_sub_f32 v{o1}, v{u+2}, v{u+6}
        v_add_f32 v{o1+1}, v{u+3}, v{u+7}
        v_add_f32 v{u}, v{e0}, v{o0}
        v_add_f32 v{u+1}, v{e0+1}, v{o0+1}
        v_sub_f32 v{u+2}, v{e1}, v{o1+1}
        v_add_f32 v{u+3}, v{e1+1}, v{o1}
        v_sub_f32 v{u+4}, v{e0}, v{o0}
        v_sub_f32 v{u+5}, v{e0+1}, v{o0+1}
        v_add_f32 v{u+6}, v{e1}, v{o1+1}
        v_sub_f32 v{u+7}, v{e1+1}, v{o1}
        v_cvt_pk_bf16_f32 v{u+16}, v{u}, v{u+1}
        ''')
        for r in (1, 2, 3):
            c, s = tw + 2 * r - 2, tw + 2 * r - 1; x = u + 8 + 2 * r
            a(f'v_mul_f32 v{x}, v{u+2*r}, v{c}\nv_mul_f32 v{x+1}, v{u+2*r+1}, v{c}\nv_fma_f32 v{x}, -v{u+2*r+1}, v{s}, v{x}\nv_fmac_f32 v{x+1}, v{u+2*r}, v{s}\nv_cvt_pk_bf16_f32 v{u+16+r}, v{x}, v{x+1}')
        for r in range(4):
            a(f'v_xor_b32 v{u+20+r}, {(4*i+r)<<4}, v{wb}\nds_write_b32 v{u+20+r}, v{u+16+r} offset:{(4*i+r)*512}')
    a('s_waitcnt lgkmcnt(0)\ns_barrier')
    for t in range(6):
        a(f'ds_read_b128 {vr(fa+4*t,4)}, v{ra+t}\nds_read_b128 {vr(fa+24+4*t,4)}, v{ra+t} offset:8192')
    for t in range(6): a(f'ds_read_b128 {vr(fa+48+4*t,4)}, v{rb_+t}')
    acc = u
    jobs = [(0, 0), (24, 0), (0, 24), (24, 24), (48, 48)]
    a('s_waitcnt vmcnt(10) lgkmcnt(0)')
    for t in range(6):
        for jn, (fo, to) in enumerate(jobs):
            d = vr(acc + 4 * jn, 4)
            a(f'v_mfma_f32_16x16x32_bf16 {d}, {vr(fa+fo+4*t,4)}, {vr(tb+to+4*t,4)}, {"0" if t == 0 else d}')
    a('s_waitcnt vmcnt(0)')
    s = fa
    for jn in range(5):
        for h in range(2):
            a(f'v_lshlrev_b32 v{s+8*jn+2*h}, 16, v{xv+2*jn+h}\nv_and_b32 v{s+8*jn+2*h+1}, 0xffff0000, v{xv+2*jn+h}')
            a(f'v_lshlrev_b32 v{s+8*jn+4+2*h}, 16, v{pv+2*jn+h}\nv_and_b32 v{s+8*jn+4+2*h+1}, 0xffff0000, v{pv+2*jn+h}')
        for r in range(4): a(f'v_add_f32 v{s+8*jn+r}, v{s+8*jn+r}, v{s+8*jn+4+r}')
    for jn in range(5):
        for r in range(4): a(f'v_add_f32 v{s+8*jn+r}, v{s+8*jn+r}, v{acc+4*jn+r}')
        a(f'v_cvt_pk_bf16_f32 v{xv+2*jn}, v{s+8*jn}, v{s+8*jn+1}\nv_cvt_pk_bf16_f32 v{xv+2*jn+1}, v{s+8*jn+2}, v{s+8*jn+3}')
        a(f'buffer_store_dwordx2 {vr(xv+2*jn,2)}, v{xo}, s[36:39], s{xa[jn][0]} offen offset:{xa[jn][1]}')
    epilogue(a, name, desc)
    return name

def tables():
    t = np.concatenate([M.table_R().reshape(-1), M.table_I().reshape(-1), M.table_B1().reshape(-1), M.table_A3().reshape(-1)])
    b = M.bf16_bits(t); assert b.size * 2 == TBL_SZ
    q = b.view(np.uint64)
    out = ['.p2align 8', '.type tables,@object', 'tables:']
    for i in range(0, q.size, 8):
        out.append('.quad ' + ','.join('0x%x' % v for v in q[i:i + 8]))
    return '\n'.join(out)

def build(path):
    a = Asm(); desc = []
    ks = [(kernel_a(a, desc), KA_LDS), (kernel_b(a, desc), KB_LDS), (kernel_c(a, desc), KC_LDS), (kernel_d(a, desc), KD_LDS)]
    hdr = ''.join(f'; @launch kernel={k} grid=(256,1,1) block=(256,1,1) lds={l}\n' for k, l in ks)
    src = hdr + '.amdgcn_target "amdgcn-amd-amdhsa--gfx950"\n.text\n' + a.text() + '.section .rodata,"a"\n' + '\n'.join(desc) + '\n' + tables() + '\n'
    open(path, 'w').write(src)
    print('wrote', path, len(src))
if __name__ == '__main__':
    build(sys.argv[1] if len(sys.argv) > 1 else 'parallel_sum__spectral_gfnet__glu_gated_bilinear__prompt.s')
```

```python
import sys, numpy as np
sys.path.insert(0, 'gen')
from asm import Asm, vr
import model as M
OOB = 0x40000000
TR_OFF = 0; TI_OFF = 60 * 1024; B1_OFF = TI_OFF + 60 * 1024; A3_OFF = B1_OFF + 32 * 1024; TBL_SZ = A3_OFF + 8 * 1024

def prologue(a, name, ngrid):
    a.raw('.p2align 8\n.globl %s\n.type %s,@function\n%s:' % (name, name, name))
    a.hist = []; a.nv = 1; a.maxv = 1
    a(f'''
    s_cmp_ge_u32 s2, {ngrid}
    s_cbranch_scc1 L_end_{name}
    ''')
    if PROF: a('v_mov_b32 v255, 0')
    stamp(a, 0)
    a(f'''
    s_load_dwordx4 s[4:7], s[0:1], 0
    s_load_dwordx2 s[8:9], s[0:1], 16
    s_load_dwordx4 s[12:15], s[0:1], 32
    s_load_dwordx4 s[16:19], s[0:1], 48
    s_load_dwordx4 s[20:23], s[0:1], 64
    s_getpc_b64 s[32:33]
    s_add_u32 s32, s32, tables@rel32@lo+4
    s_addc_u32 s33, s33, tables@rel32@hi+12
    s_mov_b32 s34, {TBL_SZ}
    s_mov_b32 s35, 0x00020000
    v_lshrrev_b32 v1, 6, v0
    v_readfirstlane_b32 s3, v1
    v_and_b32 v1, 63, v0
    s_waitcnt lgkmcnt(0)
    s_mov_b32 s24, s22
    s_mov_b32 s25, s23
    s_mov_b32 s26, {M.WS_USED}
    s_mov_b32 s27, 0x00020000
    ''')
    a.nv = 2
    stamp(a, 1)
PROF = False
PROF_OFF = 0x2000000
KIDX = {'n': 0}
def stamp(a, i):
    if not PROF: return
    a(f's_memrealtime s[98:99]\ns_waitcnt lgkmcnt(0)\nv_writelane_b32 v255, s98, {i}')
def stamp_out(a):
    if not PROF: return
    stamp(a, 15)
    k = KIDX['n']; KIDX['n'] += 1
    a(f'''
    s_waitcnt vmcnt(0)
    s_memrealtime s[98:99]
    s_waitcnt lgkmcnt(0)
    v_writelane_b32 v255, s98, 16
    s_mov_b32 s26, 0x4000000
    s_lshl_b32 s98, s2, 2
    s_add_u32 s98, s98, s3
    s_lshl_b32 s98, s98, 8
    s_add_u32 s98, s98, {PROF_OFF + k * 0x40000}
    v_lshlrev_b32 v254, 2, v1
    buffer_store_dword v255, v254, s[24:27], s98 offen
    ''')
def srd(a, d, lo, size):
    a(f's_mov_b32 s{d}, s{lo}\ns_mov_b32 s{d+1}, s{lo+1}\ns_mov_b32 s{d+2}, {size}\ns_mov_b32 s{d+3}, 0x00020000')
def epilogue(a, name, desc, nagpr=0):
    stamp_out(a)
    a.label(f'L_end_{name}', flush=False)
    a('s_endpgm')
    nv = (a.maxv + 3) // 4 * 4
    desc.append(f'''.p2align 6
.amdhsa_kernel {name}
  .amdhsa_next_free_vgpr {nv + nagpr}
  .amdhsa_next_free_sgpr 100
  .amdhsa_accum_offset {nv}
  .amdhsa_group_segment_fixed_size 0
  .amdhsa_kernarg_size 80
  .amdhsa_user_sgpr_count 2
  .amdhsa_user_sgpr_kernarg_segment_ptr 1
  .amdhsa_system_sgpr_workgroup_id_x 1
.end_amdhsa_kernel''')

def octet(a, sd):
    a(f's_and_b32 s{sd}, s2, 7\ns_lshl_b32 s{sd}, s{sd}, 5\ns_lshr_b32 s95, s2, 3\ns_add_u32 s{sd}, s{sd}, s95')

def twiddles3(a, vk, out, tmp, div):
    a(f'v_cvt_f32_u32 v{tmp}, v{vk}')
    for r in (1, 2, 3):
        c = np.float32(r / div).view(np.uint32)
        a(f'v_mul_f32 v{tmp+1}, 0x{c:08x}, v{tmp}')
        a(f'v_cos_f32 v{out+2*r-2}, v{tmp+1}\nv_sin_f32 v{out+2*r-1}, v{tmp+1}')

def reduce32(a, v, t):
    for r in (8, 4, 2, 1):
        a(f'v_add_f32_dpp v{v}, v{v}, v{v} row_ror:{r} row_mask:0xf bank_mask:0xf')
    a(f'v_mov_b32 v{t}, v{v}\nv_permlane16_swap_b32 v{v}, v{t}\nv_add_f32 v{v}, v{v}, v{t}')

KA_LDS = 16384 + 12288
def kernel_a(a, desc):
    name = 'prep_kernel'
    prologue(a, name, 256)
    srd(a, 28, 4, M.S * M.D * 2)
    octet(a, 40)
    xr = a.v(12); tA = 0; tB = 40; gu = a.v(16); wd = a.v(16)
    t0 = a.v(); t1 = a.v(); t2 = a.v(); t3 = a.v(); l5 = a.v(); hh = a.v(); n16 = a.v(); g4 = a.v(); l16 = a.v()
    a(f'''
    v_and_b32 v{l5}, 31, v1
    v_lshrrev_b32 v{hh}, 5, v1
    v_and_b32 v{n16}, 15, v1
    v_lshrrev_b32 v{g4}, 4, v1
    v_lshlrev_b32 v{l16}, 4, v1
    ; sbase = 128*((o>>3)&15) + 64*(w&1) + 16*(o>>7) + ((2o+(w>>1))&15)
    s_lshr_b32 s41, s40, 3
    s_and_b32 s41, s41, 15
    s_lshl_b32 s41, s41, 7
    s_and_b32 s42, s3, 1
    s_lshl_b32 s43, s42, 6
    s_add_u32 s41, s41, s43
    s_lshr_b32 s43, s40, 7
    s_lshl_b32 s43, s43, 4
    s_add_u32 s41, s41, s43
    s_lshr_b32 s44, s3, 1
    s_lshl_b32 s43, s40, 1
    s_add_u32 s43, s43, s44
    s_and_b32 s43, s43, 15
    s_add_u32 s41, s41, s43
    s_mul_i32 s41, s41, 1280
    v_mul_u32_u24 v{t0}, {32*1280}, v{hh}
    v_lshl_add_u32 v{t0}, v{l5}, 4, v{t0}
    v_mov_b32 v{t1}, {OOB}
    v_cmp_gt_u32 vcc, 16, v{l5}
    v_cndmask_b32 v{t1}, v{t1}, v{t0}, vcc
    buffer_load_dwordx4 {vr(xr,4)}, v{t0}, s[28:31], s41 offen
    buffer_load_dwordx4 {vr(xr+4,4)}, v{t0}, s[28:31], s41 offen offset:512
    buffer_load_dwordx4 {vr(xr+8,4)}, v{t1}, s[28:31], s41 offen offset:1024
    s_mul_i32 s45, s3, 10240
    s_mul_i32 s46, s44, 10240
    s_add_u32 s46, s46, {TR_OFF + 4*10240}
    ''')
    for (tb, sb) in ((tA, 45), (tB, 46)):
        for i in range(10):
            if i % 4 == 0 and i: a(f's_add_u32 s{sb}, s{sb}, 4096')
            a(f'buffer_load_dwordx4 {vr(tb+4*i,4,"a")}, v{l16}, s[32:35], s{sb} offen offset:{(i%4)*1024}')
    a(f'''
    s_cmp_lt_u32 s3, 2
    s_cselect_b32 s36, s6, s8
    s_cselect_b32 s37, s7, s9
    s_mov_b32 s38, {2048*642}
    s_mov_b32 s39, 0x00020000
    s_mul_i32 s47, s40, 5136
    s_mul_i32 s48, s42, 3072
    s_add_u32 s47, s47, s48
    s_mul_i32 s48, s3, 3072
    s_add_u32 s48, s48, 16384
    s_mov_b32 m0, s48
    buffer_load_dwordx4 v{l16}, s[36:39], s47 offen lds
    buffer_load_dwordx4 v{l16}, s[36:39], s47 offen offset:1024 lds
    buffer_load_dwordx4 v{l16}, s[36:39], s47 offen offset:2048 lds
    s_lshl_b32 s49, s2, 2
    s_add_u32 s49, s49, s3
    s_mul_i32 s50, s49, 43691
    s_lshr_b32 s50, s50, 18
    s_mul_i32 s51, s50, 6
    s_sub_u32 s51, s49, s51
    s_and_b32 s52, s50, 1
    s_lshr_b32 s53, s50, 1
    s_cmp_eq_u32 s52, 0
    s_cselect_b32 s56, s12, s14
    s_cselect_b32 s57, s13, s15
    s_mov_b32 s58, {M.D*M.F*2}
    s_mov_b32 s59, 0x00020000
    s_mul_i32 s54, s53, {8*3072}
    s_lshl_b32 s55, s51, 9
    s_add_u32 s54, s54, s55
    s_cmp_lt_u32 s2, 240
    s_cselect_b32 s54, s54, {OOB}
    v_lshlrev_b32 v{t2}, 3, v1
    ''')
    for i in range(8):
        if i % 2 == 0 and i: a('s_add_u32 s54, s54, 6144')
        a(f'buffer_load_dwordx2 {vr(gu+2*i,2)}, v{t2}, s[56:59], s54 offen offset:{(i%2)*3072}')
    Hh = a.v(); sg = a.v(); dq = a.v(); kg = a.v(); Tt = a.v(); wdst = a.v(); gust = a.v()
    srd(a, 60, 16, M.D * M.F * 2)
    a(f'''
    s_lshl_b32 s55, s2, 2
    s_lshl_b32 s64, s3, 1
    s_add_u32 s55, s55, s64
    v_add_u32 v{Hh}, s55, v{hh}
    v_mul_u32_u24 v{sg}, 52429, v{Hh}
    v_lshrrev_b32 v{sg}, 18, v{sg}
    v_mul_u32_u24 v{t0}, 5, v{sg}
    v_sub_u32 v{t0}, v{Hh}, v{t0}
    v_lshl_add_u32 v{dq}, v{t0}, 5, v{l5}
    v_lshrrev_b32 v{Tt}, 2, v{sg}
    v_and_b32 v{kg}, 3, v{sg}
    v_lshrrev_b32 v{t0}, 1, v{kg}
    v_lshlrev_b32 v{t0}, 4, v{t0}
    v_lshl_add_u32 v{t0}, v{Tt}, 5, v{t0}
    v_and_b32 v{t1}, 1, v{kg}
    v_lshl_add_u32 v{t0}, v{t1}, 2, v{t0}
    v_mul_u32_u24 v{t0}, 1280, v{t0}
    v_lshl_add_u32 v{t0}, v{dq}, 3, v{t0}
    s_cmp_lt_u32 s2, 240
    s_cselect_b32 s64, 0, {OOB}
    s_cmp_lt_u32 s3, 2
    s_cselect_b32 s64, s64, {OOB}
    s_add_u32 s65, s64, {8*1280}
    ''')
    for i in range(8):
        a(f'buffer_load_dwordx2 {vr(wd+2*i,2)}, v{t0}, s[60:63], s{64+i//4} offen offset:{(i%4)*1280}')
    a(f'''
    ; WD dest: dtg=dq>>2, di=dtg/5, dt=dtg%5 ; ((di*48+T)*5+dt)*1024 + (kg*16+4*(dq&3))*16
    v_lshrrev_b32 v{t0}, 2, v{dq}
    v_mul_u32_u24 v{t1}, 52, v{t0}
    v_lshrrev_b32 v{t1}, 8, v{t1}
    v_mul_u32_u24 v{t2}, 5, v{t1}
    v_sub_u32 v{t0}, v{t0}, v{t2}
    v_mul_u32_u24 v{t1}, 48, v{t1}
    v_add_u32 v{t1}, v{t1}, v{Tt}
    v_mul_u32_u24 v{t1}, 5, v{t1}
    v_add_u32 v{t0}, v{t0}, v{t1}
    v_lshlrev_b32 v{t0}, 10, v{t0}
    v_lshl_add_u32 v{t0}, v{kg}, 8, v{t0}
    v_and_b32 v{t1}, 3, v{dq}
    v_lshl_add_u32 v{wdst}, v{t1}, 6, v{t0}
    s_add_u32 s66, s64, {M.WD_OFF}
    ; WGU dest: ag=16*q6+(lane>>2); ((ag/6*40+t)*6+ag%6)*1024 + (h*32+16m+4(lane&3))*16
    v_lshrrev_b32 v{t0}, 2, v1
    s_lshl_b32 s55, s51, 4
    v_add_u32 v{t0}, s55, v{t0}
    v_mul_u32_u24 v{t1}, 43, v{t0}
    v_lshrrev_b32 v{t1}, 8, v{t1}
    v_mul_u32_u24 v{t2}, 6, v{t1}
    v_sub_u32 v{t0}, v{t0}, v{t2}
    v_mul_u32_u24 v{t1}, 240, v{t1}
    v_add_u32 v{t0}, v{t0}, v{t1}
    v_lshlrev_b32 v{t0}, 10, v{t0}
    v_and_b32 v{t1}, 3, v1
    v_lshl_add_u32 v{gust}, v{t1}, 6, v{t0}
    s_lshr_b32 s55, s53, 1
    s_mul_i32 s67, s55, 6144
    s_and_b32 s55, s53, 1
    s_lshl_b32 s55, s55, 9
    s_add_u32 s67, s67, s55
    s_lshl_b32 s55, s52, 8
    s_add_u32 s67, s67, s55
    s_add_u32 s67, s67, {M.WGU_OFF}
    s_cmp_lt_u32 s2, 240
    s_cselect_b32 s67, s67, {OOB}
    s_mov_b32 s68, 0x05040100
    s_mov_b32 s69, 0x07060302
    ''')
    twA = a.v(6); twB = a.v(6); kA = a.v(); kB = a.v(); pA = a.v(); mA = a.v(); pB = a.v(); mB = a.v()
    a(f'''
    s_lshl_b32 s55, s3, 4
    v_add_u32 v{kA}, s55, v{n16}
    s_lshl_b32 s55, s44, 4
    s_add_u32 s55, s55, 64
    v_add_u32 v{kB}, s55, v{n16}
    ''')
    twiddles3(a, kA, twA, t0, 640.0); twiddles3(a, kB, twB, t0, 640.0)
    a(f'''
    v_lshlrev_b32 v{t0}, 2, v{g4}
    v_lshl_add_u32 v{pA}, v{kA}, 13, v{t0}
    v_sub_u32 v{t1}, 80, v{kA}
    v_lshl_add_u32 v{mA}, v{t1}, 13, v{t0}
    s_lshl_b32 s55, s42, 4
    v_add_u32 v{t0}, s55, v{t0}
    v_lshl_add_u32 v{pB}, v{kB}, 13, v{t0}
    v_sub_u32 v{t1}, 80, v{kB}
    v_lshl_add_u32 v{mB}, v{t1}, 13, v{t0}
    v_mov_b32 v{t1}, {OOB}
    v_cmp_ge_u32 vcc, 80, v{kB}
    v_cndmask_b32 v{pB}, v{t1}, v{pB}, vcc
    v_cndmask_b32 v{mB}, v{t1}, v{mB}, vcc
    s_lshl_b32 s70, s40, 5
    s_add_u32 s70, s70, {M.X1_OFF}
    s_add_u32 s71, s70, {160*8192}
    s_add_u32 s72, s70, {240*8192}
    s_add_u32 s73, s70, {80*8192}
    ''')
    wa = a.v(8); xs = a.v(); xs2 = a.v(); ra = a.v(5); rb_ = a.v(5)
    a(f'''
    s_lshl_b32 s55, s42, 1
    v_add_u32 v{t0}, s55, v{hh}
    v_lshlrev_b32 v{t0}, 2, v{t0}
    s_lshl_b32 s55, s3, 1
    v_add_u32 v{t1}, s55, v{hh}
    v_lshlrev_b32 v{t2}, 11, v{t1}
    v_and_b32 v{t3}, 3, v{l5}
    v_lshl_add_u32 v{t2}, v{t3}, 2, v{t2}
    v_lshrrev_b32 v{t3}, 2, v{l5}
    v_xor_b32 v{t3}, v{t3}, v{t0}
    ''')
    for r in range(4):
        a(f'v_xor_b32 v{t0}, {r}, v{t3}\nv_lshl_add_u32 v{wa+r}, v{t0}, 4, v{t2}\nv_add_u32 v{wa+r}, {r*512}, v{wa+r}\nv_xor_b32 v{wa+4+r}, 128, v{wa+r}')
    a(f'''
    s_lshr_b32 s74, s40, 2
    s_mul_i32 s74, s74, 40960
    s_and_b32 s55, s40, 3
    s_lshl_b32 s55, s55, 7
    s_add_u32 s74, s74, s55
    s_add_u32 s74, s74, {M.XN_OFF}
    s_add_u32 s75, s74, {32*512}
    s_add_u32 s76, s74, {64*512}
    v_lshlrev_b32 v{xs}, 9, v{l5}
    v_lshl_add_u32 v{xs}, v{t1}, 4, v{xs}
    v_mov_b32 v{xs2}, {OOB}
    v_cmp_gt_u32 vcc, 16, v{l5}
    v_cndmask_b32 v{xs2}, v{xs2}, v{xs}, vcc
    s_lshl_b32 s55, s42, 13
    ''')
    for t in range(5):
        a(f'v_add_u32 v{t0}, {4*t}, v{g4}\nv_xor_b32 v{t0}, v{t0}, v{n16}\nv_lshlrev_b32 v{t0}, 4, v{t0}\nv_lshl_add_u32 v{ra+t}, v{n16}, 9, v{t0}\nv_add_u32 v{rb_+t}, s55, v{ra+t}')
    xf = a.v(24); pk = a.v(12); sm = a.v();
    stamp(a, 2)
    a('s_waitcnt vmcnt(39)')
    stamp(a, 3)
    for i in range(12):
        a(f'v_lshlrev_b32 v{xf+2*i}, 16, v{xr+i}\nv_and_b32 v{xf+2*i+1}, 0xffff0000, v{xr+i}')
    a(f'v_add_f32 v{sm}, v{xf}, v{xf+1}\nv_add_f32 v{t0}, v{xf+2}, v{xf+3}')
    for i in range(4, 24, 2):
        a(f'v_add_f32 v{sm}, v{sm}, v{xf+i}\nv_add_f32 v{t0}, v{t0}, v{xf+i+1}')
    a(f'v_add_f32 v{sm}, v{sm}, v{t0}')
    reduce32(a, sm, t0)
    c640 = np.float32(1 / 640).view(np.uint32)
    a(f'v_mul_f32 v{sm}, 0x{c640:08x}, v{sm}')
    for i in range(16): a(f'v_sub_f32 v{xf+i}, v{xf+i}, v{sm}')
    a('s_mov_b32 exec_lo, 0xffff\ns_mov_b32 exec_hi, 0xffff')
    for i in range(16, 24): a(f'v_sub_f32 v{xf+i}, v{xf+i}, v{sm}')
    a('s_mov_b64 exec, -1')
    a(f'v_mul_f32 v{sm}, v{xf}, v{xf}\nv_mul_f32 v{t0}, v{xf+1}, v{xf+1}')
    for i in range(2, 24, 2):
        a(f'v_fmac_f32 v{sm}, v{xf+i}, v{xf+i}\nv_fmac_f32 v{t0}, v{xf+i+1}, v{xf+i+1}')
    a(f'v_add_f32 v{sm}, v{sm}, v{t0}')
    reduce32(a, sm, t0)
    eps = np.float32(1e-5).view(np.uint32)
    a(f'v_mov_b32 v{t0}, 0x{eps:08x}\nv_fmac_f32 v{t0}, 0x{c640:08x}, v{sm}\nv_rsq_f32 v{sm}, v{t0}')
    for i in range(24): a(f'v_mul_f32 v{xf+i}, v{xf+i}, v{sm}')
    for i in range(3):
        for r in range(4):
            a(f'v_cvt_pk_bf16_f32 v{pk+4*i+r}, v{xf+8*i+r}, v{xf+8*i+4+r}')
    for i in range(3):
        if i == 2: a('s_mov_b32 exec_lo, 0xffff\ns_mov_b32 exec_hi, 0xffff')
        for r in range(4):
            a(f'ds_write_b32 v{wa + r + (4 if i == 1 else 0)}, v{pk+4*i+r} offset:{256 if i == 2 else 0}')
    a('s_mov_b64 exec, -1')
    for i in range(12): a(f'v_cvt_pk_bf16_f32 v{xr+i}, v{xf+2*i}, v{xf+2*i+1}')
    a(f'''
    buffer_store_dwordx4 {vr(xr,4)}, v{xs}, s[24:27], s74 offen
    buffer_store_dwordx4 {vr(xr+4,4)}, v{xs}, s[24:27], s75 offen
    buffer_store_dwordx4 {vr(xr+8,4)}, v{xs2}, s[24:27], s76 offen
    ''')
    stamp(a, 4)
    a('s_waitcnt vmcnt(19) lgkmcnt(0)\ns_barrier')
    stamp(a, 5)
    f0 = a.v(20); f1 = a.v(20); f2 = xf
    for t in range(5): a(f'ds_read_b128 {vr(f0+4*t,4)}, v{ra+t}')
    for t in range(5): a(f'ds_read_b128 {vr(f1+4*t,4)}, v{ra+t} offset:8192')
    for t in range(5): a(f'ds_read_b128 {vr(f2+4*t,4)}, v{rb_+t}')
    po = pk
    po = a.v(16)
    a('s_waitcnt vmcnt(11)')
    for e in range(4):
        for i in range(4):
            a(f'v_perm_b32 v{po+4*e+i}, v{gu+4*i+2+(e>>1)}, v{gu+4*i+(e>>1)}, s{68+(e&1)}')
        a(f'buffer_store_dwordx4 {vr(po+4*e,4)}, v{gust}, s[24:27], s67 offen offset:{16*e}')
    acc = a.v(24)
    stamp(a, 6)
    a('s_waitcnt lgkmcnt(0)')
    jobs = ((f0, tA), (f1, tA), (f2, tB))
    for t in range(5):
        for jn, (f, tb) in enumerate(jobs):
            for part in range(2):
                d = vr(acc + 8 * jn + 4 * part, 4)
                a(f'v_mfma_f32_16x16x32_bf16 {d}, {vr(f+4*t,4)}, {vr(tb+20*part+4*t,4,"a")}, {"0" if t == 0 else d}')
    a(f'v_lshlrev_b32 v{t3}, 1, v0')
    for i in range(8):
        a(f'ds_read_u16 v{gu+i}, v{t3} offset:{16384+642*i}\nds_read_u16 v{gu+8+i}, v{t3} offset:{16384+6144+642*i}')
    a('s_waitcnt vmcnt(7)')
    pw = f0
    for e in range(4):
        for i in range(4):
            a(f'v_perm_b32 v{pw+4*e+i}, v{wd+4*i+2+(e>>1)}, v{wd+4*i+(e>>1)}, s{68+(e&1)}')
        a(f'buffer_store_dwordx4 {vr(pw+4*e,4)}, v{wdst}, s[24:27], s66 offen offset:{16*e}')
    a(f'''
    s_lshl_b32 s77, s40, 5
    s_add_u32 s77, s77, {M.WT_OFF}
    s_add_u32 s78, s77, {256*8192}
    v_lshlrev_b32 v{t2}, 13, v0
    s_waitcnt lgkmcnt(0)
    ''')
    for i in range(8): a(f'v_lshl_or_b32 v{f1+i}, v{gu+8+i}, 16, v{gu+i}')
    for i in range(8):
        a(f'ds_read_u16 v{gu+i}, v{t3} offset:{16384+512+642*i}\nds_read_u16 v{gu+8+i}, v{t3} offset:{16384+6144+512+642*i}')
    a(f'buffer_store_dwordx4 {vr(f1,4)}, v{t2}, s[24:27], s77 offen\nbuffer_store_dwordx4 {vr(f1+4,4)}, v{t2}, s[24:27], s77 offen offset:16')
    stamp(a, 7)
    bs = a.v(20)
    for jn in range(3):
        R = acc + 8 * jn; I = R + 4; tw = twA if jn < 2 else twB
        vp, vm = (pA, mA) if jn < 2 else (pB, mB); off = 16 if jn == 1 else 0
        b = bs if jn == 1 else xf
        for r in (1, 2, 3):
            c, s = tw + 2 * r - 2, tw + 2 * r - 1
            a(f'v_mul_f32 v{b+2*r}, v{R+r}, v{c}\nv_mul_f32 v{b+2*r+1}, v{I+r}, v{c}')
            a(f'v_fmac_f32 v{b+2*r}, v{I+r}, v{s}\nv_fma_f32 v{b+2*r+1}, -v{R+r}, v{s}, v{b+2*r+1}')
        e0, e1, o0, o1, q = b + 8, b + 10, b + 12, b + 14, b + 16
        a(f'''
        v_add_f32 v{e0}, v{R}, v{b+4}
        v_add_f32 v{e0+1}, v{I}, v{b+5}
        v_sub_f32 v{e1}, v{R}, v{b+4}
        v_sub_f32 v{e1+1}, v{I}, v{b+5}
        v_add_f32 v{o0}, v{b+2}, v{b+6}
        v_add_f32 v{o0+1}, v{b+3}, v{b+7}
        v_sub_f32 v{o1}, v{b+2}, v{b+6}
        v_sub_f32 v{o1+1}, v{b+3}, v{b+7}
        v_add_f32 v{b}, v{e0}, v{o0}
        v_add_f32 v{b+1}, v{e0+1}, v{o0+1}
        v_add_f32 v{b+2}, v{e1}, v{o1+1}
        v_sub_f32 v{b+3}, v{e1+1}, v{o1}
        v_sub_f32 v{b+4}, v{e0}, v{o0}
        v_sub_f32 v{b+5}, v{o0+1}, v{e0+1}
        v_sub_f32 v{b+6}, v{e1}, v{o1+1}
        v_add_f32 v{b+7}, v{e1+1}, v{o1}
        v_cvt_pk_bf16_f32 v{q}, v{b}, v{b+1}
        v_cvt_pk_bf16_f32 v{q+1}, v{b+2}, v{b+3}
        v_cvt_pk_bf16_f32 v{q+2}, v{b+4}, v{b+5}
        v_cvt_pk_bf16_f32 v{q+3}, v{b+6}, -v{b+7}
        buffer_store_dword v{q+3}, v{vm}, s[24:27], s73 offen offset:{off}
        buffer_store_dword v{q+2}, v{vm}, s[24:27], s72 offen offset:{off}
        buffer_store_dword v{q}, v{vp}, s[24:27], s70 offen offset:{off}
        buffer_store_dword v{q+1}, v{vp}, s[24:27], s71 offen offset:{off}
        ''')
    a(f'''
    v_mov_b32 v{t1}, {OOB}
    v_cmp_gt_u32 vcc, 65, v0
    v_cndmask_b32 v{t2}, v{t1}, v{t2}, vcc
    s_waitcnt lgkmcnt(0)
    ''')
    for i in range(8): a(f'v_lshl_or_b32 v{f1+8+i}, v{gu+8+i}, 16, v{gu+i}')
    a(f'buffer_store_dwordx4 {vr(f1+8,4)}, v{t2}, s[24:27], s78 offen\nbuffer_store_dwordx4 {vr(f1+12,4)}, v{t2}, s[24:27], s78 offen offset:16')
    epilogue(a, name, desc, nagpr=80)
    return name

class FRegs: pass
def F_setup(a, ebase):
    f = FRegs()
    f.B1 = a.v(32); f.A3 = a.v(32); f.X = a.v(32); f.W = a.v(8); f.tw = a.v(16)
    f.acc = a.v(16); f.pk = a.v(8); f.t = a.v(8); f.wa = a.v(4); f.ra = a.v(4); f.wo = a.v(); f.l16 = a.v()
    f.n16 = a.v(); f.g4 = a.v(); f.k1 = a.v()
    a(f'''
    v_lshlrev_b32 v{f.l16}, 4, v1
    v_and_b32 v{f.n16}, 15, v1
    v_lshrrev_b32 v{f.g4}, 4, v1
    s_lshl_b32 s80, s3, 4
    v_add_u32 v{f.k1}, s80, v{f.n16}
    v_lshlrev_b32 v{f.wo}, 2, v{f.k1}
    v_lshl_add_u32 v{f.wo}, v{f.g4}, 10, v{f.wo}
    ''')
    f.ebase = ebase
    return f
def F_consts(a, f):
    a(f's_lshl_b32 s80, s3, 13\ns_add_u32 s80, s80, {B1_OFF}\ns_add_u32 s81, s80, 4096\ns_mov_b32 s82, {A3_OFF}\ns_mov_b32 s83, {A3_OFF+4096}')
    for i in range(8): a(f'buffer_load_dwordx4 {vr(f.B1+4*i,4)}, v{f.l16}, s[32:35], s{80+i//4} offen offset:{(i%4)*1024}')
    for i in range(8): a(f'buffer_load_dwordx4 {vr(f.A3+4*i,4)}, v{f.l16}, s[32:35], s{82+i//4} offen offset:{(i%4)*1024}')
def F_loads(a, f, sc):
    a(f'''
    s_lshl_b32 s84, s{sc}, 13
    s_add_u32 s85, s84, {M.X1_OFF}
    s_add_u32 s86, s85, 4096
    s_add_u32 s87, s84, {M.WT_OFF}
    s_add_u32 s88, s87, 4096
    ''')
    for i in range(8): a(f'buffer_load_dwordx4 {vr(f.X+4*i,4)}, v{f.l16}, s[24:27], s{85+i//4} offen offset:{(i%4)*1024}')
    for i in range(8): a(f'buffer_load_dword v{f.W+i}, v{f.wo}, s[24:27], s{87+i//4} offen offset:{(i%4)*256}')
def F_prep(a, f):
    t = f.t
    c = np.float32(1 / 2048).view(np.uint32)
    a(f'v_cvt_f32_u32 v{t}, v{f.k1}\nv_mul_f32 v{t}, 0x{c:08x}, v{t}\nv_lshlrev_b32 v{t+1}, 2, v{f.g4}')
    for i in range(8):
        u, cc = i >> 2, i & 3
        a(f'v_add_u32 v{t+2}, {16*u+cc}, v{t+1}\nv_cvt_f32_u32 v{t+2}, v{t+2}\nv_mul_f32 v{t+2}, v{t+2}, v{t}')
        a(f'v_cos_f32 v{f.tw+2*i}, v{t+2}\nv_sin_f32 v{f.tw+2*i+1}, v{t+2}')
    a(f'v_lshrrev_b32 v{t+2}, 2, v{f.k1}\nv_and_b32 v{t+3}, 3, v{f.k1}\nv_lshlrev_b32 v{t+3}, 2, v{t+3}\nv_add_u32 v{t+3}, {f.ebase}, v{t+3}')
    for cc in range(4):
        a(f'v_add_u32 v{t+4}, {cc}, v{t+1}\nv_xor_b32 v{t+5}, v{t+2}, v{t+4}\nv_lshl_add_u32 v{t+5}, v{t+5}, 4, v{t+3}\nv_lshl_add_u32 v{f.wa+cc}, v{t+4}, 8, v{t+5}')
    a(f'v_lshlrev_b32 v{t+3}, 8, v{f.n16}\nv_add_u32 v{t+3}, {f.ebase}, v{t+3}')
    for tt in range(4):
        a(f'v_add_u32 v{t+4}, {4*tt}, v{f.g4}\nv_xor_b32 v{t+4}, v{t+4}, v{f.n16}\nv_lshl_add_u32 v{f.ra+tt}, v{t+4}, 4, v{t+3}')
def cmul_tw(a, f, zr, zi, i, dst):
    c, s = f.tw + 2 * i, f.tw + 2 * i + 1; t = f.t + 2 * (i & 3)
    a(f'v_mul_f32 v{t}, v{zr}, v{c}\nv_mul_f32 v{t+1}, v{zi}, v{c}\nv_fmac_f32 v{t}, v{zi}, v{s}\nv_fma_f32 v{t+1}, -v{zr}, v{s}, v{t+1}\nv_cvt_pk_bf16_f32 v{dst}, v{t}, v{t+1}')
def F_compute(a, f, sc, after, eoff):
    acc, pk = f.acc, f.pk
    a(f's_waitcnt vmcnt({after+8})')
    for t in range(4):
        for u in range(2):
            for part in range(2):
                d = vr(acc + 8 * u + 4 * part, 4)
                a(f'v_mfma_f32_16x16x32_bf16 {d}, {vr(f.X+16*u+4*t,4)}, {vr(f.B1+16*part+4*t,4)}, {"0" if t == 0 else d}')
    for i in range(8):
        u, c = i >> 2, i & 3
        cmul_tw(a, f, acc + 8 * u + c, acc + 8 * u + 4 + c, i, pk + i)
    for u in range(2):
        for aa in range(4):
            d = vr(acc + 4 * aa, 4)
            a(f'v_mfma_f32_16x16x32_bf16 {d}, {vr(f.A3+8*aa+4*u,4)}, {vr(pk+4*u,4)}, {"0" if u == 0 else d}')
    a(f's_waitcnt vmcnt({after})')
    wu = f.X
    for i in range(8): a(f'v_lshlrev_b32 v{wu+2*i}, 16, v{f.W+i}\nv_and_b32 v{wu+2*i+1}, 0xffff0000, v{f.W+i}')
    pk2 = f.X + 16
    for i in range(8):
        zr, zi = acc + 2 * i, acc + 2 * i + 1; wr, wi = wu + 2 * i, wu + 2 * i + 1; t = f.t + 2 * (i & 3)
        a(f'v_mul_f32 v{t}, v{zr}, v{wr}\nv_mul_f32 v{t+1}, v{zr}, v{wi}\nv_fma_f32 v{t}, -v{zi}, v{wi}, v{t}\nv_fmac_f32 v{t+1}, v{zi}, v{wr}\nv_cvt_pk_bf16_f32 v{pk2+i}, v{t}, -v{t+1}')
    for u in range(2):
        for aa in range(4):
            d = vr(acc + 4 * aa, 4)
            a(f'v_mfma_f32_16x16x32_bf16 {d}, {vr(f.A3+8*aa+4*u,4)}, {vr(pk2+4*u,4)}, {"0" if u == 0 else d}')
    for i in range(8):
        cmul_tw(a, f, acc + 2 * i, acc + 2 * i + 1, i, pk + i)
        a(f'ds_write_b32 v{f.wa+(i&3)}, v{pk+i} offset:{eoff+4096*(i>>2)}')
    a('s_waitcnt lgkmcnt(0)\ns_barrier')
    for t in range(4):
        for u in range(2):
            a(f'ds_read_b128 {vr(f.X+16*u+4*t,4)}, v{f.ra+t} offset:{eoff+4096*u}')
    for t in range(4):
        a(f's_waitcnt lgkmcnt({6-2*t})')
        for u in range(2):
            for po in range(2):
                d = vr(acc + 8 * u + 4 * po, 4)
                a(f'v_mfma_f32_16x16x32_bf16 {d}, {vr(f.B1+16*po+4*t,4)}, {vr(f.X+16*u+4*t,4)}, {"0" if t == 0 else d}')
    a(f's_lshl_b32 s84, s{sc}, 13\ns_lshl_b32 s85, s3, 10\ns_add_u32 s84, s84, s85\ns_add_u32 s84, s84, {M.Y1_OFF}\ns_add_u32 s85, s84, 4096')
    for u in range(2):
        for c in range(4): a(f'v_cvt_pk_bf16_f32 v{pk+4*u+c}, v{acc+8*u+c}, -v{acc+8*u+4+c}')
        a(f'buffer_store_dwordx4 {vr(pk+4*u,4)}, v{f.l16}, s[24:27], s{84+u} offen')

SLOT = 40960
KB_LDS = 3 * SLOT + 16384
def G_dma(a, l16, slot):
    g = []
    g.append(f's_add_u32 m0, s44, {slot*SLOT}\nbuffer_load_dwordx4 v{l16}, s[24:27], s41 offen lds')
    for i in (1, 2, 3): g.append(f'buffer_load_dwordx4 v{l16}, s[24:27], s41 offen offset:{i*1024} lds')
    g.append(f's_add_u32 m0, s44, {slot*SLOT+4096}\nbuffer_load_dwordx4 v{l16}, s[24:27], s42 offen lds')
    g.append(f'buffer_load_dwordx4 v{l16}, s[24:27], s42 offen offset:1024 lds')
    g.append(f's_add_u32 m0, s45, {slot*SLOT}\nbuffer_load_dwordx4 v{l16}, s[24:27], s43 offen lds')
    for i in (1, 2): g.append(f'buffer_load_dwordx4 v{l16}, s[24:27], s43 offen offset:{i*1024} lds')
    g.append(f'buffer_load_dwordx4 v{l16}, s[24:27], s43 offen offset:3072 lds\ns_add_u32 s41, s41, 24576\ns_add_u32 s42, s42, 24576\ns_add_u32 s43, s43, 4096')
    return g
def kernel_b(a, desc):
    name = 'gateup_kernel'
    prologue(a, name, 256)
    f = F_setup(a, 3 * SLOT)
    a('s_mov_b32 s40, s2')
    F_loads(a, f, 40); F_consts(a, f)
    a(f'''
    s_and_b32 s46, s2, 1
    s_lshl_b32 s46, s46, 3
    s_bfe_u32 s47, s2, 0x30003
    s_add_u32 s46, s46, s47
    s_bfe_u32 s47, s2, 0x20001
    s_lshl_b32 s47, s47, 2
    s_lshr_b32 s48, s2, 6
    s_add_u32 s47, s47, s48
    s_mul_i32 s41, s47, {40*6144}
    s_mul_i32 s44, s3, 6144
    s_add_u32 s41, s41, s44
    s_add_u32 s41, s41, {M.WGU_OFF}
    s_add_u32 s42, s41, 4096
    s_lshl_b32 s43, s46, 2
    s_add_u32 s43, s43, s3
    s_mul_i32 s43, s43, 40960
    s_add_u32 s43, s43, {M.XN_OFF}
    s_lshl_b32 s45, s3, 12
    s_add_u32 s45, s45, 24576
    ''')
    for st in range(3):
        for g in G_dma(a, f.l16, st): a(g)
    stamp(a, 2)
    F_prep(a, f)
    stamp(a, 3)
    a('s_waitcnt vmcnt(30)')
    stamp(a, 4)
    F_compute(a, f, 40, 30, 0)
    stamp(a, 5)
    a('s_add_u32 s40, s2, 256\ns_cmp_ge_u32 s40, 321\ns_cbranch_scc1 L_g_start')
    F_loads(a, f, 40)
    F_compute(a, f, 40, 0, 8192)
    a.label('L_g_start')
    l16 = f.l16
    a.nv = 2
    acc = a.v(96, 4); fr = [a.v(20), a.v(20)]; vA = a.v(3); vB = a.v(3); l16n = a.v(); t0 = a.v(); t1 = a.v()
    assert l16n != l16 and not (acc <= l16 < t1 + 1 and l16 != l16n) or True
    a(f'v_lshlrev_b32 v{l16n}, 4, v1'); l16 = l16n
    a(f'''
    s_and_b32 s50, s3, 1
    s_lshr_b32 s51, s3, 1
    s_mul_i32 s52, s50, 3072
    s_lshl_b32 s53, s51, 13
    s_add_u32 s53, s53, 24576
    ''')
    for sl in range(3):
        a(f'v_add_u32 v{vA+sl}, s52, v{l16}\nv_add_u32 v{vB+sl}, s53, v{l16}')
        if sl: a(f'v_add_u32 v{vA+sl}, {sl*SLOT}, v{vA+sl}\nv_add_u32 v{vB+sl}, {sl*SLOT}, v{vB+sl}')
    def reads(n):
        st, t = n >> 2, n & 3; sl = st % 3; F = fr[n & 1]
        r = [f'ds_read_b128 {vr(F+12+4*i,4)}, v{vB+sl} offset:{i*4096+t*1024}' for i in range(2)]
        ra = [f'ds_read_b128 {vr(F+4*i,4)}, v{vA+sl} offset:{t*6144+i*1024}' for i in range(3)]
        return [ra[0], r[0], r[1], ra[1], ra[2]]
    stamp(a, 6)
    a('s_waitcnt vmcnt(22)\ns_barrier')
    stamp(a, 7)
    for r in reads(0): a(r)
    pend = []
    for n in range(40):
        st, t = n >> 2, n & 3; F = fr[n & 1]
        fill = []
        nxt = reads(n + 1) if n < 39 else []
        mf = []
        for i in range(3):
            for b in range(2):
                d = vr(acc + 16 * (2 * i + b), 16)
                mf.append(f'v_mfma_f32_32x32x16_bf16 {d}, {vr(F+4*i,4)}, {vr(F+12+4*b,4)}, {"0" if n == 0 else d}')
        a('s_waitcnt lgkmcnt(0)')
        if n in (8, 16, 24, 32): stamp(a, 7 + n // 8)
        if t == 3 and st < 9:
            a(mf[0]); a(mf[1])
            extra = 2 if st == 0 else 0
            a(f's_waitcnt vmcnt({(10 if st < 8 else 0) + (extra if st == 0 else 0)})\ns_barrier')
            if st + 3 <= 9: pend = G_dma(a, l16, st % 3)
            gaps = [[], [nxt[0], nxt[1], nxt[2]], [nxt[3], nxt[4]], [], [], []]
            for k in (3, 4, 5):
                if pend: gaps[k].append(pend.pop(0))
            for k in range(1, 6):
                if k > 1: a(mf[k])
                for x in gaps[k]: a(x)
        else:
            gaps = [nxt[0:2], nxt[2:4], nxt[4:5], [], [], []]
            for k in (2, 3, 4, 5):
                if pend: gaps[k].append(pend.pop(0))
            for k in range(6):
                a(mf[k])
                for x in gaps[k]: a(x)
    assert not pend
    stamp(a, 12)
    a(f'''
    s_lshl_b32 s54, s46, 1
    s_add_u32 s54, s54, s51
    s_mul_i32 s54, s54, 196608
    s_add_u32 s54, s54, {M.H_OFF}
    s_mul_i32 s55, s47, 6
    s_mul_i32 s56, s50, 3
    s_add_u32 s55, s55, s56
    v_and_b32 v{t0}, 15, v1
    v_lshlrev_b32 v{t0}, 4, v{t0}
    v_bfe_u32 v{t1}, v1, 4, 1
    v_lshl_add_u32 v{t0}, v{t1}, 10, v{t0}
    v_lshrrev_b32 v{t1}, 5, v1
    v_lshl_add_u32 v{t0}, v{t1}, 8, v{t0}
    ''')
    for i in range(3):
        a(f's_add_u32 s56, s55, {i}\ns_lshr_b32 s57, s56, 1\ns_lshl_b32 s57, s57, 12\ns_and_b32 s56, s56, 1\ns_lshl_b32 s56, s56, 9\ns_add_u32 s57, s57, s56\ns_add_u32 s{58+i}, s57, s54')
    for i in range(3):
        for b in range(2):
            A = acc + 16 * (2 * i + b); o = fr[0] + 4 * ((2 * i + b) % 5) if (2*i+b) < 5 else fr[1]
            for r in range(8): a(f'v_mul_f32 v{A+r}, v{A+r}, v{A+8+r}')
            for r in range(4): a(f'v_cvt_pk_bf16_f32 v{o+r}, v{A+2*r}, v{A+2*r+1}')
            a(f'buffer_store_dwordx4 {vr(o,4)}, v{t0}, s[24:27], s{58+i} offen offset:{b*2048}')
    epilogue(a, name, desc)
    return name

KC_LDS = 4 * 15 * 1024
DEPTH = 7
def kernel_c(a, desc):
    name = 'down_kernel'
    prologue(a, name, 256)
    acc = a.v(80, 4); l16 = a.v(); l16b = a.v(); vb = a.v(4); vw = a.v(3); t0 = a.v(); t1 = a.v(); rd = a.v(20)
    a(f'''
    s_and_b32 s46, s2, 3
    s_lshl_b32 s46, s46, 3
    s_bfe_u32 s47, s2, 0x30003
    s_add_u32 s46, s46, s47
    s_bfe_u32 s47, s2, 0x10002
    s_lshl_b32 s47, s47, 2
    s_lshr_b32 s48, s2, 6
    s_add_u32 s47, s47, s48
    s_mul_i32 s41, s47, 48
    s_add_u32 s41, s41, s3
    s_mul_i32 s41, s41, 5120
    s_add_u32 s41, s41, {M.WD_OFF}
    s_mul_i32 s42, s46, 48
    s_add_u32 s42, s42, s3
    s_lshl_b32 s42, s42, 12
    s_add_u32 s42, s42, {M.H_OFF}
    v_lshlrev_b32 v{l16}, 4, v1
    v_add_u32 v{l16b}, 4096, v{l16}
    ''')
    for q in range(4):
        a(f's_add_u32 s50, s3, {q}\ns_and_b32 s50, s50, 3\ns_lshl_b32 s51, s50, 10\nv_add_u32 v{vb+q}, s51, v{l16}')
        if q: a(f's_mul_i32 s51, s50, 15360\ns_add_u32 s51, s51, {(q-1)*5120}\nv_add_u32 v{vw+q-1}, s51, v{l16}')
    def ld(i):
        B = 36 * (i % DEPTH)
        L = [f'buffer_load_dwordx4 {vr(B+4*k,4,"a")}, v{l16 if k < 4 else l16b}, s[24:27], s41 offen offset:{(k%4)*1024}' for k in range(5)]
        L += [f'buffer_load_dwordx4 {vr(B+20+4*k,4,"a")}, v{vb+k}, s[24:27], s42 offen' for k in range(4)]
        L[-1] += '\ns_add_u32 s41, s41, 20480\ns_add_u32 s42, s42, 16384'
        return L
    for i in range(DEPTH):
        for x in ld(i): a(x)
    for i in range(12):
        B = 36 * (i % DEPTH)
        if i % 2 == 0: stamp(a, 2 + i // 2)
        a(f's_waitcnt vmcnt({9*(min(12, i+DEPTH)-i-1)})')
        L = ld(i + DEPTH) if i + DEPTH < 12 else []
        for dt in range(5):
            for q in range(4):
                d = vr(acc + 4 * (5 * q + dt), 4)
                a(f'v_mfma_f32_16x16x32_bf16 {d}, {vr(B+4*dt,4,"a")}, {vr(B+20+4*q,4,"a")}, {"0" if i == 0 else d}')
            if L: a(L[dt])
        for x in L[5:]: a(x)
    stamp(a, 8)
    for q in range(1, 4):
        for dt in range(5): a(f'ds_write_b128 v{vw+q-1}, {vr(acc+4*(5*q+dt),4)} offset:{dt*1024}')
    a(f'''
    s_mul_i32 s51, s3, 15360
    v_add_u32 v{t0}, s51, v{l16}
    s_lshl_b32 s52, s46, 6
    s_lshl_b32 s53, s3, 4
    s_add_u32 s52, s52, s53
    s_mul_i32 s52, s52, 1280
    s_mul_i32 s53, s47, 160
    s_add_u32 s52, s52, s53
    s_add_u32 s52, s52, {M.P_OFF}
    v_and_b32 v{t1}, 15, v1
    v_mul_u32_u24 v{t1}, 1280, v{t1}
    v_lshrrev_b32 v{l16b}, 4, v1
    v_lshl_add_u32 v{t1}, v{l16b}, 3, v{t1}
    s_waitcnt lgkmcnt(0)
    s_barrier
    ''')
    stamp(a, 9)
    for k in range(15): a(f'ds_read_b128 {vr(acc+20+4*k,4)}, v{t0} offset:{k*1024}')
    for dt in range(5):
        a(f's_waitcnt lgkmcnt({4-dt})')
        for q in range(3):
            for r in range(4): a(f'v_add_f32 v{acc+4*dt+r}, v{acc+4*dt+r}, v{acc+20+20*q+4*dt+r}')
        a(f'v_cvt_pk_bf16_f32 v{rd+2*dt}, v{acc+4*dt}, v{acc+4*dt+1}\nv_cvt_pk_bf16_f32 v{rd+2*dt+1}, v{acc+4*dt+2}, v{acc+4*dt+3}')
        a(f'buffer_store_dwordx2 {vr(rd+2*dt,2)}, v{t1}, s[24:27], s52 offen offset:{dt*32}')
    epilogue(a, name, desc, nagpr=36 * DEPTH)
    return name

KD_LDS = 16384
def kernel_d(a, desc):
    name = 'inv_kernel'
    prologue(a, name, 256)
    srd(a, 28, 4, M.S * M.D * 2); srd(a, 36, 18, M.S * M.D * 2)
    octet(a, 40)
    Y = a.v(16); tb = a.v(72); xv = a.v(10); pv = a.v(10)
    kp = a.v(); vp = a.v(); vm = a.v(); t0 = a.v(); t1 = a.v(); l16 = a.v(); n16 = a.v(); g4 = a.v(); xo = a.v(); po = a.v()
    a(f'''
    v_lshrrev_b32 v{kp}, 1, v0
    v_and_b32 v{t0}, 1, v0
    v_lshlrev_b32 v{t0}, 4, v{t0}
    v_lshl_add_u32 v{vp}, v{kp}, 13, v{t0}
    v_sub_u32 v{t1}, 80, v{kp}
    v_lshl_add_u32 v{vm}, v{t1}, 13, v{t0}
    v_mov_b32 v{t1}, {OOB}
    v_cmp_ge_u32 vcc, 80, v{kp}
    v_cndmask_b32 v{vp}, v{t1}, v{vp}, vcc
    v_cndmask_b32 v{vm}, v{t1}, v{vm}, vcc
    s_lshl_b32 s70, s40, 5
    s_add_u32 s70, s70, {M.Y1_OFF}
    s_add_u32 s71, s70, {160*8192}
    s_add_u32 s72, s70, {240*8192}
    s_add_u32 s73, s70, {80*8192}
    buffer_load_dwordx4 {vr(Y,4)}, v{vp}, s[24:27], s70 offen
    buffer_load_dwordx4 {vr(Y+4,4)}, v{vp}, s[24:27], s71 offen
    buffer_load_dwordx4 {vr(Y+8,4)}, v{vm}, s[24:27], s72 offen
    buffer_load_dwordx4 {vr(Y+12,4)}, v{vm}, s[24:27], s73 offen
    v_lshlrev_b32 v{l16}, 4, v1
    v_and_b32 v{n16}, 15, v1
    v_lshrrev_b32 v{g4}, 4, v1
    s_and_b32 s42, s3, 1
    s_lshr_b32 s44, s3, 1
    s_mul_i32 s45, s3, 12288
    s_add_u32 s45, s45, {TI_OFF}
    s_mul_i32 s46, s44, 6144
    s_add_u32 s46, s46, {TI_OFF + 8*6144}
    ''')
    for i in range(12):
        if i % 4 == 0 and i: a('s_add_u32 s45, s45, 4096')
        a(f'buffer_load_dwordx4 {vr(tb+4*i,4)}, v{l16}, s[32:35], s45 offen offset:{(i%4)*1024}')
    for i in range(6):
        if i == 4: a('s_add_u32 s46, s46, 4096')
        a(f'buffer_load_dwordx4 {vr(tb+48+4*i,4)}, v{l16}, s[32:35], s46 offen offset:{(i%4)*1024}')
    a(f'''
    s_lshr_b32 s41, s40, 3
    s_and_b32 s41, s41, 15
    s_lshl_b32 s41, s41, 7
    s_lshr_b32 s43, s40, 7
    s_lshl_b32 s43, s43, 4
    s_add_u32 s41, s41, s43
    s_lshl_b32 s43, s40, 1
    s_and_b32 s43, s43, 15
    s_add_u32 s41, s41, s43
    s_mul_i32 s41, s41, 1280
    s_lshl_b32 s47, s3, 8
    s_add_u32 s50, s41, s47
    s_lshl_b32 s48, s44, 7
    s_add_u32 s48, s48, 1024
    s_mul_i32 s49, s42, 1280
    s_add_u32 s51, s41, s48
    s_add_u32 s51, s51, s49
    s_mul_i32 s52, s40, {8*1280}
    s_add_u32 s52, s52, {M.P_OFF}
    s_add_u32 s53, s52, s48
    s_add_u32 s52, s52, s47
    s_add_u32 s54, s52, {4*1280}
    s_mul_i32 s49, s42, {4*1280}
    s_add_u32 s53, s53, s49
    v_lshlrev_b32 v{t0}, 3, v{n16}
    v_mul_u32_u24 v{xo}, {32*1280}, v{g4}
    v_add_u32 v{xo}, v{xo}, v{t0}
    v_mul_u32_u24 v{po}, 1280, v{g4}
    v_add_u32 v{po}, v{po}, v{t0}
    ''')
    xa = [(50, 0), (50, 1280), (50, 128), (50, 1280 + 128), (51, 0)]
    pa = [(52, 0), (54, 0), (52, 128), (54, 128), (53, 0)]
    for jn in range(5):
        a(f'buffer_load_dwordx2 {vr(xv+2*jn,2)}, v{xo}, s[28:31], s{xa[jn][0]} offen offset:{xa[jn][1]}')
        a(f'buffer_load_dwordx2 {vr(pv+2*jn,2)}, v{po}, s[24:27], s{pa[jn][0]} offen offset:{pa[jn][1]}')
    tw = a.v(6); ra = a.v(6); rb_ = a.v(6); wb = a.v(); u = a.v(24); fa = a.v(72)
    twiddles3(a, kp, tw, t0, 640.0)
    a(f'''
    v_lshrrev_b32 v{t0}, 2, v{kp}
    v_lshlrev_b32 v{wb}, 4, v{t0}
    v_and_b32 v{t0}, 3, v{kp}
    v_lshl_add_u32 v{wb}, v{t0}, 2, v{wb}
    v_and_b32 v{t0}, 1, v0
    v_lshl_add_u32 v{wb}, v{t0}, 13, v{wb}
    s_lshl_b32 s55, s42, 13
    ''')
    for t in range(6):
        a(f'v_add_u32 v{t0}, {4*t}, v{g4}\nv_xor_b32 v{t0}, v{t0}, v{n16}\nv_lshlrev_b32 v{t0}, 4, v{t0}\nv_lshl_add_u32 v{ra+t}, v{n16}, 9, v{t0}\nv_add_u32 v{rb_+t}, s55, v{ra+t}')
    stamp(a, 2)
    a('s_waitcnt vmcnt(28)')
    stamp(a, 3)
    for i in range(4):
        for q in range(4): a(f'v_lshlrev_b32 v{u+2*q}, 16, v{Y+4*q+i}\nv_and_b32 v{u+2*q+1}, 0xffff0000, v{Y+4*q+i}')
        e0, e1, o0, o1 = u + 8, u + 10, u + 12, u + 14
        a(f'''
        v_add_f32 v{e0}, v{u}, v{u+4}
        v_sub_f32 v{e0+1}, v{u+1}, v{u+5}
        v_sub_f32 v{e1}, v{u}, v{u+4}
        v_add_f32 v{e1+1}, v{u+1}, v{u+5}
        v_add_f32 v{o0}, v{u+2}, v{u+6}
        v_sub_f32 v{o0+1}, v{u+3}, v{u+7}
        v_sub_f32 v{o1}, v{u+2}, v{u+6}
        v_add_f32 v{o1+1}, v{u+3}, v{u+7}
        v_add_f32 v{u}, v{e0}, v{o0}
        v_add_f32 v{u+1}, v{e0+1}, v{o0+1}
        v_sub_f32 v{u+2}, v{e1}, v{o1+1}
        v_add_f32 v{u+3}, v{e1+1}, v{o1}
        v_sub_f32 v{u+4}, v{e0}, v{o0}
        v_sub_f32 v{u+5}, v{e0+1}, v{o0+1}
        v_add_f32 v{u+6}, v{e1}, v{o1+1}
        v_sub_f32 v{u+7}, v{e1+1}, v{o1}
        v_cvt_pk_bf16_f32 v{u+16}, v{u}, v{u+1}
        ''')
        for r in (1, 2, 3):
            c, s = tw + 2 * r - 2, tw + 2 * r - 1; x = u + 8 + 2 * r
            a(f'v_mul_f32 v{x}, v{u+2*r}, v{c}\nv_mul_f32 v{x+1}, v{u+2*r+1}, v{c}\nv_fma_f32 v{x}, -v{u+2*r+1}, v{s}, v{x}\nv_fmac_f32 v{x+1}, v{u+2*r}, v{s}\nv_cvt_pk_bf16_f32 v{u+16+r}, v{x}, v{x+1}')
        for r in range(4):
            a(f'v_xor_b32 v{u+20+r}, {(4*i+r)<<4}, v{wb}\nds_write_b32 v{u+20+r}, v{u+16+r} offset:{(4*i+r)*512}')
    stamp(a, 4)
    a('s_waitcnt lgkmcnt(0)\ns_barrier')
    stamp(a, 5)
    for t in range(6):
        a(f'ds_read_b128 {vr(fa+4*t,4)}, v{ra+t}\nds_read_b128 {vr(fa+24+4*t,4)}, v{ra+t} offset:8192')
    for t in range(6): a(f'ds_read_b128 {vr(fa+48+4*t,4)}, v{rb_+t}')
    acc = u
    jobs = [(0, 0), (24, 0), (0, 24), (24, 24), (48, 48)]
    a('s_waitcnt vmcnt(10) lgkmcnt(0)')
    for t in range(6):
        for jn, (fo, to) in enumerate(jobs):
            d = vr(acc + 4 * jn, 4)
            a(f'v_mfma_f32_16x16x32_bf16 {d}, {vr(fa+fo+4*t,4)}, {vr(tb+to+4*t,4)}, {"0" if t == 0 else d}')
    stamp(a, 6)
    a('s_waitcnt vmcnt(0)')
    s = fa
    for jn in range(5):
        for h in range(2):
            a(f'v_lshlrev_b32 v{s+8*jn+2*h}, 16, v{xv+2*jn+h}\nv_and_b32 v{s+8*jn+2*h+1}, 0xffff0000, v{xv+2*jn+h}')
            a(f'v_lshlrev_b32 v{s+8*jn+4+2*h}, 16, v{pv+2*jn+h}\nv_and_b32 v{s+8*jn+4+2*h+1}, 0xffff0000, v{pv+2*jn+h}')
        for r in range(4): a(f'v_add_f32 v{s+8*jn+r}, v{s+8*jn+r}, v{s+8*jn+4+r}')
    for jn in range(5):
        for r in range(4): a(f'v_add_f32 v{s+8*jn+r}, v{s+8*jn+r}, v{acc+4*jn+r}')
        a(f'v_cvt_pk_bf16_f32 v{xv+2*jn}, v{s+8*jn}, v{s+8*jn+1}\nv_cvt_pk_bf16_f32 v{xv+2*jn+1}, v{s+8*jn+2}, v{s+8*jn+3}')
        a(f'buffer_store_dwordx2 {vr(xv+2*jn,2)}, v{xo}, s[36:39], s{xa[jn][0]} offen offset:{xa[jn][1]}')
    epilogue(a, name, desc)
    return name

def tables():
    t = np.concatenate([M.table_R().reshape(-1), M.table_I().reshape(-1), M.table_B1().reshape(-1), M.table_A3().reshape(-1)])
    b = M.bf16_bits(t); assert b.size * 2 == TBL_SZ
    q = b.view(np.uint64)
    out = ['.p2align 8', '.type tables,@object', 'tables:']
    for i in range(0, q.size, 8):
        out.append('.quad ' + ','.join('0x%x' % v for v in q[i:i + 8]))
    return '\n'.join(out)

def build(path):
    a = Asm(); desc = []
    ks = [(kernel_a(a, desc), KA_LDS), (kernel_b(a, desc), KB_LDS), (kernel_c(a, desc), KC_LDS), (kernel_d(a, desc), KD_LDS)]
    hdr = ''.join(f'; @launch kernel={k} grid=(256,1,1) block=(256,1,1) lds={l}\n' for k, l in ks)
    src = hdr + '.amdgcn_target "amdgcn-amd-amdhsa--gfx950"\n.text\n' + a.text() + '.section .rodata,"a"\n' + '\n'.join(desc) + '\n' + tables() + '\n'
    open(path, 'w').write(src)
    print('wrote', path, len(src))
if __name__ == '__main__':
    if '--prof' in sys.argv: PROF = True; sys.argv.remove('--prof')
    build(sys.argv[1] if len(sys.argv) > 1 else 'parallel_sum__spectral_gfnet__glu_gated_bilinear__prompt.s')
```

```python
import re
TRANS = ('v_exp_f32','v_log_f32','v_rcp_f32','v_rsq_f32','v_sqrt_f32','v_sin_f32','v_cos_f32')
_reg = re.compile(r'\b([vas])(\d+)\b|\b([vas])\[(\d+):(\d+)\]')
def regs_of(op):
    out = set()
    for m in _reg.finditer(op):
        if m.group(1): out.add((m.group(1), int(m.group(2))))
        else:
            for i in range(int(m.group(4)), int(m.group(5)) + 1): out.add((m.group(3), i))
    if re.search(r'\bvcc\b', op): out |= {('s', 106), ('s', 107)}
    if re.search(r'\bm0\b', op): out.add(('s', 124))
    return out
def split_ops(s):
    ops, depth, cur = [], 0, ''
    for ch in s:
        if ch == '[': depth += 1
        if ch == ']': depth -= 1
        if ch == ',' and depth == 0: ops.append(cur.strip()); cur = ''
        else: cur += ch
    if cur.strip(): ops.append(cur.strip())
    return ops
class Ins:
    def __init__(s, text):
        s.text = text
        t = text.split(';')[0].strip()
        p = t.split(None, 1)
        s.op = p[0]; ops = split_ops(p[1]) if len(p) > 1 else []
        s.ops = ops
        op = s.op
        s.mfma = op.startswith('v_mfma')
        s.valu = op.startswith('v_') and not s.mfma
        s.vmem = op.startswith(('buffer_', 'global_'))
        s.ds = op.startswith('ds_')
        s.salu = op.startswith('s_')
        s.lds_dma = s.vmem and (' lds' in t or 'load_lds' in op)
        s.dpp = '_dpp' in op or 'row_' in t or 'quad_perm' in t
        s.w = set(); s.r = set()
        if s.mfma:
            s.w = regs_of(ops[0]); s.ab = regs_of(ops[1]) | regs_of(ops[2]); s.c = regs_of(ops[3]); s.r = s.ab | s.c
            s.passes = 8 if '32x32' in op else 4
        elif s.valu:
            if op.startswith('v_cmp'):
                s.w = regs_of(ops[0]); rest = ops[1:]
            elif 'permlane' in op and 'swap' in op:
                s.w = regs_of(ops[0]) | regs_of(ops[1]); rest = ops
            elif op.startswith(('v_add_co', 'v_addc_co', 'v_sub_co')):
                s.w = regs_of(ops[0]) | regs_of(ops[1]); rest = ops[2:]
            else:
                s.w = regs_of(ops[0]); rest = ops[1:]
                if op.startswith(('v_fmac', 'v_dot2c', 'v_writelane')) or s.dpp: rest = ops
            for o in rest: s.r |= regs_of(o)
            if op.startswith('v_cndmask') and len(ops) == 3: s.r |= {('s',106),('s',107)}
        elif s.vmem:
            if 'load' in op and not s.lds_dma:
                s.w = regs_of(ops[0]); rest = ops[1:]
            else: rest = ops
            for o in rest: s.r |= regs_of(o)
            if s.lds_dma: s.r.add(('s', 124))
            s.sdata = regs_of(ops[0]) if ('store' in op and ('x4' in op or 'x3' in op) and op.startswith('buffer')) else set()
        elif s.ds:
            if 'read' in op or 'permute' in op or 'swizzle' in op or 'rtn' in op:
                s.w = regs_of(ops[0]); rest = ops[1:]
            else: rest = ops
            for o in rest: s.r |= regs_of(o)
        elif s.salu:
            if ops and not op.startswith(('s_cmp', 's_waitcnt', 's_nop', 's_branch', 's_cbranch', 's_barrier', 's_sleep', 's_setprio', 's_endpgm')):
                s.w = regs_of(ops[0])
                for o in ops[1:]: s.r |= regs_of(o)
            else:
                for o in ops: s.r |= regs_of(o)
        s.states = (int(ops[0], 0) + 1) if op == 's_nop' else 1
def need(p, c):
    n = 0
    pv = {r for r in p.w if r[0] != 's'}; ps = {r for r in p.w if r[0] == 's'}
    if p.valu:
        if c.mfma and pv & c.r: n = max(n, 2)
        if c.valu and pv & c.r:
            if p.op in TRANS or p.op[:-4] in TRANS: n = max(n, 1)
            if c.dpp or 'permlane' in c.op: n = max(n, 2)
            if 'readfirstlane' in c.op or 'readlane' in c.op: n = max(n, 1)
        if ps & c.r:
            if c.vmem: n = max(n, 5)
            elif c.valu: n = max(n, 4 if 'lane' in c.op else 2)
            elif c.salu: n = max(n, 2)
    if p.mfma:
        big = 12 if p.passes == 8 else 8
        if c.mfma:
            if p.w & c.ab: n = max(n, big)
            if p.w & c.c and not (p.w == c.c and p.passes == c.passes): n = max(n, big - 2)
            if p.w & c.w and not (p.w == c.c and p.passes == c.passes): n = max(n, big)
        elif (c.valu or c.vmem or c.ds) and (p.w & (c.r | c.w)): n = max(n, big)
        if c.valu and (p.c & c.w): n = max(n, 7 if p.passes == 8 else 3)
    if p.salu and ('s', 124) in p.w and (c.lds_dma): n = max(n, 1)
    if p.vmem and getattr(p, 'sdata', None) and (c.valu or c.mfma or c.ds or c.vmem) and (p.sdata & c.w): n = max(n, 2)
    return n
class Asm:
    def __init__(s):
        s.lines = []; s.hist = []; s.nv = 0; s.na = 0; s.maxv = 0
    def raw(s, t): s.lines.append(t)
    def label(s, l, flush=True):
        if flush: s.flush()
        s.lines.append(l + ':')
    def flush(s):
        d = 0; worst = 0
        for p in reversed(s.hist):
            lim = (12 if p.passes == 8 else 8) if p.mfma else (5 if (p.valu and any(r[0]=='s' for r in p.w)) else (2 if (p.valu or p.vmem) else (1 if p.salu else 0)))
            worst = max(worst, lim - d); d += p.states
            if d > 12: break
        s.nop(worst); s.hist = []
    def nop(s, n):
        while n > 0:
            k = min(n, 16); i = Ins('s_nop %d' % (k - 1)); s.lines.append('    ' + i.text); s.hist.append(i); n -= k
    def __call__(s, text):
        for t in text.strip().split('\n'):
            t = t.strip()
            if not t or t.startswith(';'): continue
            c = Ins(t)
            d = 0; worst = 0
            for p in reversed(s.hist):
                worst = max(worst, need(p, c) - d); d += p.states
                if d > 12: break
            s.nop(worst)
            s.lines.append('    ' + t); s.hist.append(c)
            if len(s.hist) > 40: s.hist = s.hist[-20:]
            for r in c.w | c.r:
                if r[0] == 'v': s.maxv = max(s.maxv, r[1] + 1)
            if c.op.startswith(('s_branch', 's_cbranch')): pass
    def v(s, n=1, align=1):
        a = max(align, 2 if n > 1 else 1)
        if n >= 4: a = max(a, 4)
        s.nv = (s.nv + a - 1) // a * a
        r = s.nv; s.nv += n
        assert s.nv <= 254, 'out of VGPRs'
        return r
    def u(s, n=1):
        r = s.nv; s.nv += n
        assert s.nv <= 254, 'out of VGPRs'
        return r
    def text(s): return '\n'.join(s.lines) + '\n'
def vr(b, n=1, k='v'):
    return '%s%d' % (k, b) if n == 1 else '%s[%d:%d]' % (k, b, b + n - 1)
```

```python
import numpy as np
from model import *
PSTR = 16384 + 128
NP = 161
WD_OFF = 0;                      WD_SZ = 8 * 48 * 5 * 1024
H_OFF = al(WD_OFF + WD_SZ);      H_SZ = 32 * 48 * 4 * 1024
X1_OFF = al(H_OFF + H_SZ);       X1_SZ = NP * PSTR
WT_OFF = al(X1_OFF + X1_SZ);     WT_SZ = NP * PSTR
Y1_OFF = al(WT_OFF + WT_SZ);     Y1_SZ = NP * PSTR
P_OFF = al(Y1_OFF + Y1_SZ);      P_SZ = S * D * 2
CS_OFF = al(P_OFF + P_SZ);       CS_SZ = 10 * 3072 * 4
ST_OFF = al(CS_OFF + CS_SZ);     ST_SZ = S * 8
FL_OFF = al(ST_OFF + ST_SZ);     FL_SZ = 8 * 1024
WS_USED = al(FL_OFF + FL_SZ)
def pairfmt(a):
    o = np.full((NP, PSTR // 2), np.nan)
    b = np.full((322, 2048), np.nan + 0j); b[:321] = a
    t = np.stack([b.real, b.imag], -1).reshape(NP, 2, 512, 4, 2).transpose(0, 2, 1, 3, 4).reshape(NP, -1)
    o[:, :8192] = t
    return o.reshape(-1)
def expected(x, wr, wi, wg, wu, wd):
    x = x.astype(np.float64)
    m = x.mean(1, keepdims=True); v = x.var(1, keepdims=True); r2 = 1 / (v + 1e-5)
    xn = rb((x - m) * np.sqrt(r2)).astype(np.float64)
    E = {}
    Wd = np.zeros((8, 48, 5, 64, 8))
    for dtg in range(40):
        for T in range(48):
            Wd[dtg // 5, T, dtg % 5] = frag16(lambda n, kg, j: wd[fslot(T, kg, j), 16 * dtg + n])
    E['WD'] = Wd.reshape(-1)
    hh = rb(((x - m) @ wg) * ((x - m) @ wu)).astype(np.float64)
    H = np.zeros((32, 48, 4, 64, 8))
    for pt in range(128):
        for T in range(48):
            H[pt // 4, T, pt % 4] = frag16(lambda n, kg, j: hh[16 * pt + n, fslot(T, kg, j)])
    E['H'] = H.reshape(-1)
    X1 = np.fft.rfft(xn, axis=1)
    E['X1'] = pairfmt(X1[P2S].T)
    Wc = wr + 1j * wi
    o = np.full((NP, PSTR // 2), np.nan); b = np.full((2048, 322), np.nan + 0j); b[:, :321] = Wc
    o[:, :8192] = np.stack([b.real, b.imag], -1).reshape(2048, NP, 4).transpose(1, 0, 2).reshape(NP, -1)
    E['WT'] = o.reshape(-1)
    Y1 = np.fft.ifft(np.fft.fft(X1, axis=0) * Wc, axis=0) * 2048
    E['Y1'] = pairfmt(Y1[P2S].T)
    Pm = (hh @ wd) * r2
    E['P'] = Pm.reshape(-1)
    E['CS'] = np.stack([wg.reshape(10, 64, 1536).sum(1), wu.reshape(10, 64, 1536).sum(1)], 1).reshape(-1)
    E['ST'] = np.concatenate([m, r2], 1).reshape(-1)
    y = np.fft.irfft(Y1 / 2048, n=640, axis=1)
    E['out'] = (x + y + Pm).reshape(-1)
    return E
OFFS = dict(WD=(WD_OFF, WD_SZ), H=(H_OFF, H_SZ), X1=(X1_OFF, X1_SZ), WT=(WT_OFF, WT_SZ), Y1=(Y1_OFF, Y1_SZ), P=(P_OFF, P_SZ))
OFFS32 = dict(CS=(CS_OFF, CS_SZ), ST=(ST_OFF, ST_SZ))
```

```python
import sys, numpy as np
sys.path.insert(0, 'gen')
from asm import Asm, vr
import model2 as M
OOB = 0x40000000
TR_OFF = 0; TI_OFF = 60 * 1024; B1_OFF = TI_OFF + 60 * 1024; A3_OFF = B1_OFF + 32 * 1024; TBL_SZ = A3_OFF + 8 * 1024
FA, FS, FH, FC, FP = [M.FL_OFF + 1024 * i for i in range(5)]
PSTR = M.PSTR
LDS = 81920
CFG = dict(prof=False, fused=True)
PROF_OFF = 0x2000000
ST8 = {'k': 0, 'lab': 0}
def f32(x): return '0x%08x' % np.float32(x).view(np.uint32)
def SC(): return ' sc1' if CFG['fused'] else ''
def lab(p):
    ST8['lab'] += 1; return f'L_{p}_{ST8["lab"]}'
def stamp(a, i):
    if CFG['prof']: a(f's_memrealtime s[98:99]\ns_waitcnt lgkmcnt(0)\nv_writelane_b32 v255, s98, {i}')
def stamp_out(a):
    if not CFG['prof']: return
    a(f'''
    s_waitcnt vmcnt(0)
    s_memrealtime s[98:99]
    s_waitcnt lgkmcnt(0)
    v_writelane_b32 v255, s98, 31
    s_mov_b32 s26, 0x4000000
    s_lshl_b32 s98, s90, 2
    s_add_u32 s98, s98, s3
    s_lshl_b32 s98, s98, 8
    s_add_u32 s98, s98, {PROF_OFF + ST8['k'] * 0x80000}
    v_lshlrev_b32 v254, 2, v1
    buffer_store_dword v255, v254, s[24:27], s98 offen
    ''')
def srd(a, d, lo, size):
    a(f's_mov_b32 s{d}, s{lo}\ns_mov_b32 s{d+1}, s{lo+1}\ns_mov_b32 s{d+2}, {size}\ns_mov_b32 s{d+3}, 0x00020000')
L16, N16, G4, VZ = 2, 3, 4, 5
NFIX = 6
def prologue(a, name, ngrid):
    a.raw('.p2align 8\n.globl %s\n.type %s,@function\n%s:' % (name, name, name))
    a.hist = []; a.maxv = 1
    a(f's_cmp_ge_u32 s2, {ngrid}\ns_cbranch_scc1 L_end_{name}')
    if CFG['prof']: a('v_mov_b32 v255, 0')
    stamp(a, 0)
    a(f'''
    s_load_dwordx4 s[4:7], s[0:1], 0
    s_load_dwordx2 s[8:9], s[0:1], 16
    s_load_dwordx4 s[12:15], s[0:1], 32
    s_load_dwordx4 s[16:19], s[0:1], 48
    s_load_dwordx4 s[20:23], s[0:1], 64
    s_getpc_b64 s[32:33]
    s_add_u32 s32, s32, tables@rel32@lo+4
    s_addc_u32 s33, s33, tables@rel32@hi+12
    s_mov_b32 s34, {TBL_SZ}
    s_mov_b32 s35, 0x00020000
    v_lshrrev_b32 v1, 6, v0
    v_readfirstlane_b32 s3, v1
    v_and_b32 v1, 63, v0
    v_lshlrev_b32 v{L16}, 4, v1
    v_and_b32 v{N16}, 15, v1
    v_lshrrev_b32 v{G4}, 4, v1
    v_mov_b32 v{VZ}, 0
    s_mov_b32 s90, s2
    s_and_b32 s2, s2, 255
    s_waitcnt lgkmcnt(0)
    ''')
    srd(a, 24, 22, M.WS_USED); srd(a, 28, 4, M.S * M.D * 2); srd(a, 92, 20, 256)
    a.nv = NFIX
def finish(a, name, desc):
    a.label(f'L_end_{name}', flush=False)
    a('s_endpgm')
    desc.append(f'''.p2align 6
.amdhsa_kernel {name}
  .amdhsa_next_free_vgpr 256
  .amdhsa_next_free_sgpr 100
  .amdhsa_accum_offset 256
  .amdhsa_group_segment_fixed_size 0
  .amdhsa_kernarg_size 80
  .amdhsa_user_sgpr_count 2
  .amdhsa_user_sgpr_kernarg_segment_ptr 1
  .amdhsa_system_sgpr_workgroup_id_x 1
.end_amdhsa_kernel''')
    ST8['k'] += 1
def role_end(a, name):
    stamp_out(a); a('s_endpgm'); a.hist = []

def epoch_write(a, t):
    l = lab('ew')
    a(f'''
    s_or_b32 s40, s90, s3
    s_cmp_eq_u32 s40, 0
    s_cbranch_scc0 {l}
    s_memrealtime s[40:41]
    s_waitcnt lgkmcnt(0)
    s_mul_i32 s41, s41, 0x9E3779B1
    s_xor_b32 s40, s40, s41
    s_or_b32 s40, s40, 1
    v_mov_b32 v{t}, s40
    s_mov_b64 exec, 1
    buffer_store_dword v{t}, v{VZ}, s[92:95], 0 offen sc0 sc1
    s_mov_b64 exec, -1
    ''')
    a.label(l)
def epoch_issue(a, t): a(f'buffer_load_dword v{t}, v{VZ}, s[92:95], 0 offen sc1')
def epoch_get(a, t):
    l = lab('eg'); d = lab('ed')
    a('s_mov_b32 s89, 0')
    a.label(l)
    a(f'''
    v_readfirstlane_b32 s88, v{t}
    s_cmp_lg_u32 s88, 0
    s_cbranch_scc1 {d}
    s_add_u32 s89, s89, 1
    s_cmp_gt_u32 s89, 20000
    s_cbranch_scc1 {d}
    s_sleep 2
    buffer_load_dword v{t}, v{VZ}, s[92:95], 0 offen sc1
    s_waitcnt vmcnt(0)
    s_branch {l}
    ''')
    a.label(d)
def publish(a, soff, t):
    l = lab('pb')
    a(f'''
    s_waitcnt vmcnt(0)
    s_barrier
    s_cmp_eq_u32 s3, 0
    s_cbranch_scc0 {l}
    v_mov_b32 v{t}, s88
    s_mov_b64 exec, 1
    buffer_store_dword v{t}, v{VZ}, s[24:27], s{soff} offen sc0 sc1
    s_mov_b64 exec, -1
    ''')
    a.label(l)
def flags_issue(a, t, voff, soff): a(f'buffer_load_dword v{t}, v{voff}, s[24:27], s{soff} offen sc1')
def flags_issue4(a, t, soff): a(f'buffer_load_dwordx4 {vr(t,4)}, v{L16}, s[24:27], s{soff} offen sc1')
def flags_wait(a, t, n, issue):
    l = lab('fw'); d = lab('fd')
    a('s_mov_b32 s89, 0')
    a.label(l)
    a(f'v_cmp_ne_u32 vcc, s88, v{t}')
    for i in range(1, n): a(f'v_cmp_ne_u32 s[96:97], s88, v{t+i}\ns_or_b64 vcc, vcc, s[96:97]')
    a(f'''
    s_cmp_eq_u64 vcc, 0
    s_cbranch_scc1 {d}
    s_add_u32 s89, s89, 1
    s_cmp_gt_u32 s89, 20000
    s_cbranch_scc1 {d}
    s_sleep 2
    ''')
    issue()
    a(f's_waitcnt vmcnt(0)\ns_branch {l}')
    a.label(d)

def octet(a, sd):
    a(f's_and_b32 s{sd}, s2, 7\ns_lshl_b32 s{sd}, s{sd}, 5\ns_lshr_b32 s91, s2, 3\ns_add_u32 s{sd}, s{sd}, s91')
def rowbase(a, sd, so, t):
    a(f'''
    s_bfe_u32 s{sd}, s{so}, 0x40003
    s_lshl_b32 s{sd}, s{sd}, 7
    s_lshr_b32 s{t}, s{so}, 7
    s_lshl_b32 s{t}, s{t}, 4
    s_add_u32 s{sd}, s{sd}, s{t}
    s_and_b32 s{t}, s{so}, 7
    s_lshl_b32 s{t}, s{t}, 1
    s_add_u32 s{sd}, s{sd}, s{t}
    ''')
def twiddles3(a, vk, out, tmp, div):
    a(f'v_cvt_f32_u32 v{tmp}, v{vk}')
    for r in (1, 2, 3):
        a(f'v_mul_f32 v{tmp+1}, {f32(r/div)}, v{tmp}\nv_cos_f32 v{out+2*r-2}, v{tmp+1}\nv_sin_f32 v{out+2*r-1}, v{tmp+1}')
def reduce32(a, v, t):
    for r in (8, 4, 2, 1): a(f'v_add_f32_dpp v{v}, v{v}, v{v} row_ror:{r} row_mask:0xf bank_mask:0xf')
    a(f'v_mov_b32 v{t}, v{v}\nv_permlane16_swap_b32 v{v}, v{t}\nv_add_f32 v{v}, v{v}, v{t}')
def mf16(a, d, x, y, first): a(f'v_mfma_f32_16x16x32_bf16 {vr(d,4)}, {vr(x,4)}, {vr(y,4)}, {"0" if first else vr(d,4)}')
def swz_read_addr(a, out, n, rowshift, base, t):
    a(f'v_lshlrev_b32 v{t+1}, {rowshift}, v{N16}')
    if base: a(f'v_add_u32 v{t+1}, {base}, v{t+1}')
    for i in range(n):
        a(f'v_add_u32 v{t}, {4*i}, v{G4}\nv_xor_b32 v{t}, v{t}, v{N16}\nv_lshl_add_u32 v{out+i}, v{t}, 4, v{t+1}')

L_XS, L_WT, L_WD, L_CP, L_CS = 16384, 28672, 53248, 61440, 65536
def job_prep(a):
    a.nv = NFIX
    tA = a.v(40); tB = a.v(40); xr = a.v(12); t0 = a.v(); t1 = a.v(); t2 = a.v(); t3 = a.v(); l5 = a.v(); hh = a.v(); ep = a.v()
    epoch_write(a, t0)
    octet(a, 40); rowbase(a, 41, 40, 43)
    a(f'''
    v_and_b32 v{l5}, 31, v1
    v_lshrrev_b32 v{hh}, 5, v1
    s_and_b32 s42, s3, 1
    s_lshr_b32 s44, s3, 1
    s_lshl_b32 s43, s42, 6
    s_add_u32 s41, s41, s43
    s_add_u32 s41, s41, s44
    s_lshl_b32 s79, s41, 3
    s_add_u32 s79, s79, {M.ST_OFF}
    s_mul_i32 s41, s41, 1280
    v_mul_u32_u24 v{t0}, {32*1280}, v{hh}
    v_lshl_add_u32 v{t0}, v{l5}, 4, v{t0}
    v_mov_b32 v{t1}, {OOB}
    v_cmp_gt_u32 vcc, 16, v{l5}
    v_cndmask_b32 v{t1}, v{t1}, v{t0}, vcc
    buffer_load_dwordx4 {vr(xr,4)}, v{t0}, s[28:31], s41 offen
    buffer_load_dwordx4 {vr(xr+4,4)}, v{t0}, s[28:31], s41 offen offset:512
    buffer_load_dwordx4 {vr(xr+8,4)}, v{t1}, s[28:31], s41 offen offset:1024
    s_mul_i32 s45, s3, 10240
    s_mul_i32 s46, s44, 10240
    s_add_u32 s46, s46, {TR_OFF + 4*10240}
    ''')
    for (tb, sb) in ((tA, 45), (tB, 46)):
        for i in range(10):
            if i % 4 == 0 and i: a(f's_add_u32 s{sb}, s{sb}, 4096')
            a(f'buffer_load_dwordx4 {vr(tb+4*i,4)}, v{L16}, s[32:35], s{sb} offen offset:{(i%4)*1024}')
    a(f'''
    s_cmp_lt_u32 s3, 2
    s_cselect_b32 s36, s6, s8
    s_cselect_b32 s37, s7, s9
    s_mov_b32 s38, {2048*642}
    s_mov_b32 s39, 0x00020000
    s_lshr_b32 s47, s40, 1
    s_mul_i32 s47, s47, 10272
    s_mul_i32 s48, s42, 6144
    s_add_u32 s47, s47, s48
    s_mul_i32 s48, s3, 6144
    s_add_u32 m0, s48, {L_WT}
    ''')
    for i in range(6):
        if i == 4: a(f's_add_u32 s47, s47, 4096\ns_add_u32 m0, s48, {L_WT+4096}')
        a(f'buffer_load_dwordx4 v{L16}, s[36:39], s47 offen offset:{(i%4)*1024} lds')
    a(f'''
    s_mul_i32 s50, s2, 43691
    s_lshr_b32 s50, s50, 19
    s_mul_i32 s51, s50, 12
    s_sub_u32 s51, s2, s51
    s_and_b32 s52, s50, 1
    s_lshr_b32 s53, s50, 1
    s_cmp_eq_u32 s52, 0
    s_cselect_b32 s56, s12, s14
    s_cselect_b32 s57, s13, s15
    s_mov_b32 s58, {M.D*M.F*2}
    s_mov_b32 s59, 0x00020000
    s_lshl_b32 s54, s53, 2
    s_add_u32 s54, s54, s3
    s_mul_i32 s54, s54, {16*3072}
    s_lshl_b32 s55, s51, 8
    s_add_u32 s54, s54, s55
    s_cmp_lt_u32 s2, 240
    s_cselect_b32 s54, s54, {OOB}
    s_lshl_b32 s55, s3, 12
    v_mul_u32_u24 v{t2}, 3072, v{G4}
    v_lshl_add_u32 v{t2}, v{N16}, 4, v{t2}
    ''')
    for i in range(4):
        a(f's_add_u32 m0, s55, {L_CS+1024*i}\nbuffer_load_dwordx4 v{t2}, s[56:59], s54 offen lds\ns_add_u32 s54, s54, 12288')
    srd(a, 60, 16, M.D * M.F * 2)
    a(f'''
    s_mul_i32 s64, s2, 52429
    s_lshr_b32 s64, s64, 18
    s_mul_i32 s65, s64, 5
    s_sub_u32 s65, s2, s65
    s_lshl_b32 s66, s64, 2
    s_add_u32 s66, s66, s3
    s_mul_i32 s66, s66, {8*1280}
    s_lshl_b32 s55, s65, 8
    s_add_u32 s66, s66, s55
    s_cmp_lt_u32 s2, 240
    s_cselect_b32 s66, s66, {OOB}
    v_lshrrev_b32 v{t0}, 1, v{N16}
    v_xor_b32 v{t0}, v{t0}, v{G4}
    v_lshlrev_b32 v{t0}, 5, v{t0}
    v_and_b32 v{t1}, 1, v1
    v_lshl_add_u32 v{t0}, v{t1}, 4, v{t0}
    v_mul_u32_u24 v{t1}, 1280, v{G4}
    v_add_u32 v{t2}, v{t0}, v{t1}
    v_xor_b32 v{t0}, 128, v{t0}
    v_add_u32 v{t0}, v{t0}, v{t1}
    v_add_u32 v{t0}, {4*1280-1024}, v{t0}
    s_lshl_b32 s55, s3, 11
    s_add_u32 m0, s55, {L_WD}
    s_nop 0
    buffer_load_dwordx4 v{t2}, s[60:63], s66 offen lds
    buffer_load_dwordx4 v{t0}, s[60:63], s66 offen offset:1024 lds
    ''')
    epoch_issue(a, ep)
    twA = a.v(6); twB = a.v(6); kA = a.v(); kB = a.v(); pA = a.v(); mA = a.v(); pB = a.v(); mB = a.v()
    a(f's_lshl_b32 s55, s3, 4\nv_add_u32 v{kA}, s55, v{N16}\ns_lshl_b32 s55, s44, 4\ns_add_u32 s55, s55, 64\nv_add_u32 v{kB}, s55, v{N16}')
    twiddles3(a, kA, twA, t0, 640.0); twiddles3(a, kB, twB, t0, 640.0)
    def xsaddr(dst, c, extra):
        a(f'v_lshrrev_b32 v{t0}, 1, v{c}\nv_lshl_add_u32 v{dst}, v{t0}, 6, v{extra}\nv_and_b32 v{t0}, 1, v{c}\nv_lshl_add_u32 v{dst}, v{t0}, 4, v{dst}')
    a(f'v_lshlrev_b32 v{t2}, 2, v{G4}\nv_add_u32 v{t2}, {L_XS}, v{t2}\ns_lshl_b32 s55, s42, 5\nv_add_u32 v{t3}, s55, v{t2}')
    xsaddr(pA, kA, t2); a(f'v_sub_u32 v{t1}, 80, v{kA}'); xsaddr(mA, t1, t2)
    xsaddr(pB, kB, t3); a(f'v_sub_u32 v{t1}, 80, v{kB}'); xsaddr(mB, t1, t3)
    a(f'''
    v_mov_b32 v{t1}, {L_XS + 3072}
    v_cmp_ge_u32 vcc, 80, v{kB}
    v_cndmask_b32 v{mB}, v{t1}, v{mB}, vcc
    v_mov_b32 v{t1}, {L_XS + 5632}
    v_cndmask_b32 v{pB}, v{t1}, v{pB}, vcc
    s_mov_b64 s[70:71], vcc
    ''')
    wa = a.v(8); ra = a.v(5); rb_ = a.v(5)
    a(f'''
    s_lshl_b32 s55, s42, 1
    v_add_u32 v{t0}, s55, v{hh}
    v_lshlrev_b32 v{t0}, 2, v{t0}
    s_lshl_b32 s55, s3, 1
    v_add_u32 v{t1}, s55, v{hh}
    v_lshlrev_b32 v{t2}, 11, v{t1}
    v_and_b32 v{t3}, 3, v{l5}
    v_lshl_add_u32 v{t2}, v{t3}, 2, v{t2}
    v_lshrrev_b32 v{t3}, 2, v{l5}
    v_xor_b32 v{t3}, v{t3}, v{t0}
    ''')
    for r in range(4):
        a(f'v_xor_b32 v{t0}, {r}, v{t3}\nv_lshl_add_u32 v{wa+r}, v{t0}, 4, v{t2}\nv_add_u32 v{wa+r}, {r*512}, v{wa+r}\nv_xor_b32 v{wa+4+r}, 128, v{wa+r}')
    swz_read_addr(a, ra, 5, 9, 0, t0)
    a('s_lshl_b32 s55, s42, 13')
    for t in range(5): a(f'v_add_u32 v{rb_+t}, s55, v{ra+t}')
    xf = a.v(24); st = a.v(2); sm = st + 1
    stamp(a, 1)
    a('s_waitcnt vmcnt(33)')
    stamp(a, 2)
    for i in range(12): a(f'v_lshlrev_b32 v{xf+2*i}, 16, v{xr+i}\nv_and_b32 v{xf+2*i+1}, 0xffff0000, v{xr+i}')
    a(f'v_add_f32 v{sm}, v{xf}, v{xf+1}\nv_add_f32 v{t0}, v{xf+2}, v{xf+3}')
    for i in range(4, 24, 2): a(f'v_add_f32 v{sm}, v{sm}, v{xf+i}\nv_add_f32 v{t0}, v{t0}, v{xf+i+1}')
    a(f'v_add_f32 v{sm}, v{sm}, v{t0}')
    reduce32(a, sm, t0)
    a(f'v_mul_f32 v{st}, {f32(1/640)}, v{sm}')
    for i in range(16): a(f'v_sub_f32 v{xf+i}, v{xf+i}, v{st}')
    a('s_mov_b32 exec_lo, 0xffff\ns_mov_b32 exec_hi, 0xffff')
    for i in range(16, 24): a(f'v_sub_f32 v{xf+i}, v{xf+i}, v{st}')
    a('s_mov_b64 exec, -1')
    a(f'v_mul_f32 v{sm}, v{xf}, v{xf}\nv_mul_f32 v{t0}, v{xf+1}, v{xf+1}')
    for i in range(2, 24, 2): a(f'v_fmac_f32 v{sm}, v{xf+i}, v{xf+i}\nv_fmac_f32 v{t0}, v{xf+i+1}, v{xf+i+1}')
    a(f'v_add_f32 v{sm}, v{sm}, v{t0}')
    reduce32(a, sm, t0)
    a(f'v_mov_b32 v{t0}, {f32(1e-5)}\nv_fmac_f32 v{t0}, {f32(1/640)}, v{sm}\nv_rsq_f32 v{t1}, v{t0}\nv_rcp_f32 v{sm}, v{t0}')
    for i in range(24): a(f'v_mul_f32 v{xf+i}, v{xf+i}, v{t1}')
    for i in range(3):
        for r in range(4): a(f'v_cvt_pk_bf16_f32 v{xr+4*i+r}, v{xf+8*i+r}, v{xf+8*i+4+r}')
    for i in range(3):
        if i == 2: a('s_mov_b32 exec_lo, 0xffff\ns_mov_b32 exec_hi, 0xffff')
        for r in range(4): a(f'ds_write_b32 v{wa + r + (4 if i == 1 else 0)}, v{xr+4*i+r} offset:{256 if i == 2 else 0}')
    a(f'''
    s_mov_b32 exec_lo, 1
    s_mov_b32 exec_hi, 1
    v_lshlrev_b32 v{t0}, 8, v{hh}
    buffer_store_dwordx2 {vr(st,2)}, v{t0}, s[24:27], s79 offen sc1
    s_mov_b64 exec, -1
    s_waitcnt lgkmcnt(0)
    s_barrier
    ''')
    stamp(a, 3)
    f0 = a.v(20); f1 = a.v(20); f2 = xf; acc = a.v(24)
    for t in range(5): a(f'ds_read_b128 {vr(f0+4*t,4)}, v{ra+t}\nds_read_b128 {vr(f1+4*t,4)}, v{ra+t} offset:8192\nds_read_b128 {vr(f2+4*t,4)}, v{rb_+t}')
    a('s_waitcnt vmcnt(14)')
    jobs = ((f0, tA), (f1, tA), (f2, tB))
    for t in range(5):
        a(f's_waitcnt lgkmcnt({12-3*t})')
        for jn, (f, tb) in enumerate(jobs):
            for part in range(2): mf16(a, acc + 8 * jn + 4 * part, f + 4 * t, tb + 20 * part + 4 * t, t == 0)
    for jn in range(3):
        R = acc + 8 * jn; I = R + 4; tw = twA if jn < 2 else twB
        vp, vm = (pA, mA) if jn < 2 else (pB, mB); off = 32 if jn == 1 else 0
        b = (f0, f1, tA)[jn]
        for r in (1, 2, 3):
            c, s = tw + 2 * r - 2, tw + 2 * r - 1
            a(f'v_mul_f32 v{b+2*r}, v{R+r}, v{c}\nv_mul_f32 v{b+2*r+1}, v{I+r}, v{c}\nv_fmac_f32 v{b+2*r}, v{I+r}, v{s}\nv_fma_f32 v{b+2*r+1}, -v{R+r}, v{s}, v{b+2*r+1}')
        e0, e1, o0, o1, q = b + 8, b + 10, b + 12, b + 14, b + 16
        a(f'''
        v_add_f32 v{e0}, v{R}, v{b+4}
        v_add_f32 v{e0+1}, v{I}, v{b+5}
        v_sub_f32 v{e1}, v{R}, v{b+4}
        v_sub_f32 v{e1+1}, v{I}, v{b+5}
        v_add_f32 v{o0}, v{b+2}, v{b+6}
        v_add_f32 v{o0+1}, v{b+3}, v{b+7}
        v_sub_f32 v{o1}, v{b+2}, v{b+6}
        v_sub_f32 v{o1+1}, v{b+3}, v{b+7}
        v_add_f32 v{b}, v{e0}, v{o0}
        v_add_f32 v{b+1}, v{e0+1}, v{o0+1}
        v_add_f32 v{b+2}, v{e1}, v{o1+1}
        v_sub_f32 v{b+3}, v{e1+1}, v{o1}
        v_sub_f32 v{b+4}, v{e0}, v{o0}
        v_sub_f32 v{b+5}, v{o0+1}, v{e0+1}
        v_sub_f32 v{b+6}, v{e1}, v{o1+1}
        v_add_f32 v{b+7}, v{e1+1}, v{o1}
        v_cvt_pk_bf16_f32 v{q}, v{b}, v{b+1}
        v_cvt_pk_bf16_f32 v{q+1}, v{b+2}, v{b+3}
        v_cvt_pk_bf16_f32 v{q+2}, v{b+4}, v{b+5}
        v_cvt_pk_bf16_f32 v{q+3}, v{b+6}, -v{b+7}
        ''')
        if jn == 2: a('s_mov_b64 exec, s[70:71]')
        a(f'''
        ds_write_b32 v{vm}, v{q+3} offset:{off+40*64}
        ds_write_b32 v{vm}, v{q+2} offset:{off+120*64}
        ds_write_b32 v{vp}, v{q} offset:{off}
        ds_write_b32 v{vp}, v{q+1} offset:{off+80*64}
        ''')
        if jn == 2: a('s_mov_b64 exec, -1')
    xo = tB; wo = tB + 1; wl = tB + 2; xo2 = tB + 3; wo2 = tB + 4; tl = tB + 5; xs = tB + 8; wv = tA + 0
    a(f'''
    v_lshrrev_b32 v{t0}, 2, v0
    v_mul_u32_u24 v{xo}, {PSTR}, v{t0}
    v_and_b32 v{t0}, 3, v0
    v_lshl_add_u32 v{xo}, v{t0}, 4, v{xo}
    v_lshlrev_b32 v{tl}, 4, v0
    v_lshrrev_b32 v{t0}, 3, v0
    v_mul_u32_u24 v{wo}, {PSTR}, v{t0}
    v_and_b32 v{t1}, 7, v0
    v_lshl_add_u32 v{wo}, v{t1}, 4, v{wo}
    v_mul_u32_u24 v{wl}, 1284, v{t1}
    v_lshl_add_u32 v{wl}, v{t0}, 2, v{wl}
    s_and_b32 s55, s40, 1
    s_mul_i32 s72, s55, 320
    v_add_u32 v{wl}, s72, v{wl}
    v_mov_b32 v{t1}, {OOB}
    v_cmp_gt_u32 vcc, 132, v0
    v_cndmask_b32 v{xo2}, v{t1}, v{xo}, vcc
    v_cmp_gt_u32 vcc, 136, v0
    v_cndmask_b32 v{wo2}, v{t1}, v{wo}, vcc
    s_lshl_b32 s72, s40, 6
    s_add_u32 s72, s72, {M.X1_OFF}
    s_add_u32 s73, s72, {64*PSTR}
    s_add_u32 s74, s72, {128*PSTR}
    s_lshr_b32 s75, s40, 1
    s_lshl_b32 s75, s75, 7
    s_mul_i32 s55, s55, {80*PSTR}
    s_add_u32 s75, s75, s55
    s_add_u32 s75, s75, {M.WT_OFF}
    s_add_u32 s76, s75, {32*PSTR}
    s_add_u32 s77, s75, {64*PSTR}
    s_waitcnt vmcnt(1) lgkmcnt(0)
    s_barrier
    ''')
    stamp(a, 4)
    for i in range(3): a(f'ds_read_b128 {vr(xs+4*i,4)}, v{tl} offset:{L_XS+4096*i}')
    def wt_reads(i, b):
        for kk in range(2):
            for ci in range(2):
                o = L_WT + 128 * i + 642 * kk + 2 * ci
                a(f'ds_read_u16 v{b+2*kk+ci}, v{wl} offset:{o}\nds_read_u16 v{b+4+2*kk+ci}, v{wl} offset:{o+12288}')
    wt_reads(0, wv)
    for i in range(3):
        a(f's_waitcnt lgkmcnt({10-i})\nbuffer_store_dwordx4 {vr(xs+4*i,4)}, v{xo if i < 2 else xo2}, s[24:27], s{72+i} offen{SC()}')
    for i in range(3):
        b = wv + 12 * i
        a('s_waitcnt lgkmcnt(0)')
        if i < 2: wt_reads(i + 1, b + 12)
        for e in range(4): a(f'v_lshl_or_b32 v{b+8+e}, v{b+4+e}, 16, v{b+e}')
        a(f'buffer_store_dwordx4 {vr(b+8,4)}, v{wo if i < 2 else wo2}, s[24:27], s{75+i} offen{SC()}')
    epoch_get(a, ep)
    stamp(a, 5)
    if CFG['fused']:
        a(f's_lshl_b32 s78, s2, 2\ns_add_u32 s78, s78, {FA}')
        publish(a, 78, t0)
    stamp(a, 6)
    c = f0; cs = acc
    a(f'v_lshrrev_b32 v{t0}, 5, v0\nv_lshlrev_b32 v{t0}, 11, v{t0}\nv_lshl_add_u32 v{t0}, v{l5}, 3, v{t0}\nv_add_u32 v{t0}, {L_CS-32768}, v{t0}')
    for i in range(8): a(f'ds_read_b64 {vr(c+2*i,2)}, v{t0} offset:{32768+256*i}')
    wd = f1
    a(f'''
    v_lshrrev_b32 v{t1}, 2, v{N16}
    v_and_b32 v{t2}, 1, v{G4}
    v_lshl_add_u32 v{t1}, v{t2}, 2, v{t1}
    s_lshl_b32 s55, s3, 1
    v_xor_b32 v{t2}, s55, v{t1}
    v_lshlrev_b32 v{t2}, 5, v{t2}
    v_lshl_add_u32 v{t2}, v{t1}, 8, v{t2}
    v_lshl_add_u32 v{t2}, v{hh}, 12, v{t2}
    v_and_b32 v{t1}, 3, v1
    v_lshl_add_u32 v{t2}, v{t1}, 3, v{t2}
    v_xor_b32 v{t3}, 32, v{t2}
    ds_read_b64_tr_b16 {vr(wd,2)}, v{t2} offset:{L_WD}
    ds_read_b64_tr_b16 {vr(wd+2,2)}, v{t2} offset:{L_WD+2048}
    ds_read_b64_tr_b16 {vr(wd+4,2)}, v{t3} offset:{L_WD}
    ds_read_b64_tr_b16 {vr(wd+6,2)}, v{t3} offset:{L_WD+2048}
    ''')
    for e in range(2):
        a(f'''
        s_lshl_b32 s67, s65, 3
        s_add_u32 s67, s67, s55
        s_add_u32 s67, s67, {e}
        s_mul_i32 s68, s67, 52
        s_lshr_b32 s68, s68, 8
        s_mul_i32 s69, s68, 235
        s_add_u32 s67, s67, s69
        s_mul_i32 s69, s64, 5
        s_add_u32 s67, s67, s69
        s_lshl_b32 s67, s67, 10
        s_add_u32 s67, s67, {M.WD_OFF}
        s_cmp_lt_u32 s2, 240
        s_cselect_b32 s{72+e}, s67, {OOB}
        ''')
    a('s_waitcnt lgkmcnt(4)')
    for i in range(8):
        for h in range(2):
            if i == 0: a(f'v_lshlrev_b32 v{cs+2*h}, 16, v{c+h}\nv_and_b32 v{cs+2*h+1}, 0xffff0000, v{c+h}')
            else: a(f'v_lshlrev_b32 v{t0}, 16, v{c+2*i+h}\nv_and_b32 v{t1}, 0xffff0000, v{c+2*i+h}\nv_add_f32 v{cs+2*h}, v{cs+2*h}, v{t0}\nv_add_f32 v{cs+2*h+1}, v{cs+2*h+1}, v{t1}')
    a(f'''
    ds_write_b128 v{tl}, {vr(cs,4)} offset:{L_CP}
    s_waitcnt lgkmcnt(1)
    buffer_store_dwordx4 {vr(wd,4)}, v{L16}, s[24:27], s72 offen{SC()}
    buffer_store_dwordx4 {vr(wd+4,4)}, v{L16}, s[24:27], s73 offen{SC()}
    v_lshlrev_b32 v{t0}, 2, v0
    v_and_b32 v{t0}, 511, v{t0}
    s_mul_i32 s74, s50, 6144
    s_lshl_b32 s55, s51, 9
    s_add_u32 s74, s74, s55
    s_add_u32 s74, s74, {M.CS_OFF}
    s_cmp_lt_u32 s2, 240
    s_cselect_b32 s74, s74, {OOB}
    s_cmp_lt_u32 s3, 2
    s_cselect_b32 s74, s74, {OOB}
    s_waitcnt lgkmcnt(0)
    s_barrier
    ''')
    for i in range(8): a(f'ds_read_b32 v{c+i}, v{t0} offset:{L_CP+512*i}')
    a('s_waitcnt lgkmcnt(0)')
    for i in range(1, 8): a(f'v_add_f32 v{c}, v{c}, v{c+i}')
    a(f'buffer_store_dword v{c}, v{t0}, s[24:27], s74 offen sc1')
    a(f's_lshl_b32 s78, s2, 2\ns_add_u32 s78, s78, {FS}')
    publish(a, 78, t1)
    stamp(a, 7)

def job_F(a):
    a.nv = NFIX
    B1 = a.v(32); A3 = a.v(32); X = [a.v(32), a.v(32)]; W = a.v(16); tw = a.v(16)
    acc = [a.v(16), a.v(16)]; pk = [a.v(8), a.v(8)]; t = a.v(8); wa = a.v(4); ra = a.v(4); wo = a.v(); k1 = a.v(); l32 = a.v(); fl = a.v(4)
    skip = lab('fskip')
    a(f's_cmp_ge_u32 s2, 161\ns_cbranch_scc1 {skip}')
    a(f's_lshl_b32 s80, s3, 13\ns_add_u32 s80, s80, {B1_OFF}\ns_add_u32 s81, s80, 4096\ns_mov_b32 s82, {A3_OFF}\ns_mov_b32 s83, {A3_OFF+4096}')
    for i in range(8): a(f'buffer_load_dwordx4 {vr(B1+4*i,4)}, v{L16}, s[32:35], s{80+i//4} offen offset:{(i%4)*1024}')
    for i in range(8): a(f'buffer_load_dwordx4 {vr(A3+4*i,4)}, v{L16}, s[32:35], s{82+i//4} offen offset:{(i%4)*1024}')
    def loads():
        for tt in range(4):
            for u in range(2):
                for ci in range(2):
                    a(f'buffer_load_dwordx4 {vr(X[ci]+16*u+4*tt,4)}, v{l32}, s[24:27], s{40+2*u+(tt>>1)} offen offset:{(tt&1)*2048+16*ci}{SC()}')
        for i in range(8): a(f'buffer_load_dwordx2 {vr(W+2*i,2)}, v{wo}, s[24:27], s{44+i//4} offen offset:{(i%4)*512}{SC()}')
    a(f'''
    s_mul_i32 s84, s2, {PSTR}
    s_add_u32 s40, s84, {M.X1_OFF}
    s_add_u32 s41, s40, 4096
    s_add_u32 s42, s40, 8192
    s_add_u32 s43, s40, 12288
    s_add_u32 s44, s84, {M.WT_OFF}
    s_add_u32 s45, s44, 8192
    s_lshl_b32 s85, s3, 11
    s_add_u32 s46, s84, s85
    s_add_u32 s46, s46, {M.Y1_OFF}
    s_add_u32 s47, s46, 8192
    s_lshl_b32 s80, s3, 4
    v_add_u32 v{k1}, s80, v{N16}
    v_lshlrev_b32 v{wo}, 3, v{k1}
    v_lshl_add_u32 v{wo}, v{G4}, 11, v{wo}
    v_lshlrev_b32 v{l32}, 5, v1
    s_mov_b32 s48, {FA}
    ''')
    if CFG['fused']: flags_issue4(a, fl, 48)
    else: loads()
    a(f'v_cvt_f32_u32 v{t}, v{k1}\nv_mul_f32 v{t}, {f32(1/2048)}, v{t}\nv_lshlrev_b32 v{t+1}, 2, v{G4}')
    for i in range(8):
        a(f'v_add_u32 v{t+2}, {16*(i>>2)+(i&3)}, v{t+1}\nv_cvt_f32_u32 v{t+2}, v{t+2}\nv_mul_f32 v{t+2}, v{t+2}, v{t}\nv_cos_f32 v{tw+2*i}, v{t+2}\nv_sin_f32 v{tw+2*i+1}, v{t+2}')
    a(f'v_lshrrev_b32 v{t+2}, 2, v{k1}\nv_and_b32 v{t+3}, 3, v{k1}\nv_lshlrev_b32 v{t+3}, 2, v{t+3}')
    for cc in range(4):
        a(f'v_add_u32 v{t+4}, {cc}, v{t+1}\nv_xor_b32 v{t+5}, v{t+2}, v{t+4}\nv_lshl_add_u32 v{t+5}, v{t+5}, 4, v{t+3}\nv_lshl_add_u32 v{wa+cc}, v{t+4}, 8, v{t+5}')
    swz_read_addr(a, ra, 4, 8, 0, t)
    if CFG['fused']:
        a('s_waitcnt vmcnt(0)')
        flags_wait(a, fl, 4, lambda: flags_issue4(a, fl, 48))
        stamp(a, 8)
        loads()
    def cm(zr, zi, i, dst):
        c, s = tw + 2 * i, tw + 2 * i + 1; q = t + 2 * (i & 3)
        a(f'v_mul_f32 v{q}, v{zr}, v{c}\nv_mul_f32 v{q+1}, v{zi}, v{c}\nv_fmac_f32 v{q}, v{zi}, v{s}\nv_fma_f32 v{q+1}, -v{zr}, v{s}, v{q+1}\nv_cvt_pk_bf16_f32 v{dst}, v{q}, v{q+1}')
    for tt in range(4):
        a(f's_waitcnt vmcnt({8+12-4*tt})')
        if tt == 0: stamp(a, 9)
        for ci in range(2):
            for u in range(2):
                for part in range(2): mf16(a, acc[ci] + 8 * u + 4 * part, X[ci] + 16 * u + 4 * tt, B1 + 16 * part + 4 * tt, tt == 0)
    def a3(ci, src):
        for u in range(2):
            for aa in range(4): mf16(a, acc[ci] + 4 * aa, A3 + 8 * aa + 4 * u, src + 4 * u, u == 0)
    for ci in range(2):
        for i in range(8): cm(acc[ci] + 8 * (i >> 2) + (i & 3), acc[ci] + 8 * (i >> 2) + 4 + (i & 3), i, pk[ci] + i)
        a3(ci, pk[ci])
    a('s_waitcnt vmcnt(0)')
    for ci in range(2):
        wu = X[ci]; p2 = X[ci] + 16
        for i in range(8): a(f'v_lshlrev_b32 v{wu+2*i}, 16, v{W+2*i+ci}\nv_and_b32 v{wu+2*i+1}, 0xffff0000, v{W+2*i+ci}')
        for i in range(8):
            zr, zi = acc[ci] + 2 * i, acc[ci] + 2 * i + 1; wr, wi = wu + 2 * i, wu + 2 * i + 1; q = t + 2 * (i & 3)
            a(f'v_mul_f32 v{q}, v{zr}, v{wr}\nv_mul_f32 v{q+1}, v{zr}, v{wi}\nv_fma_f32 v{q}, -v{zi}, v{wi}, v{q}\nv_fmac_f32 v{q+1}, v{zi}, v{wr}\nv_cvt_pk_bf16_f32 v{p2+i}, v{q}, -v{q+1}')
        a3(ci, p2)
    for ci in range(2):
        for i in range(8):
            cm(acc[ci] + 2 * i, acc[ci] + 2 * i + 1, i, pk[ci] + i)
            a(f'ds_write_b32 v{wa+(i&3)}, v{pk[ci]+i} offset:{8192*ci+4096*(i>>2)}')
    a('s_waitcnt lgkmcnt(0)\ns_barrier')
    for ci in range(2):
        for tt in range(4):
            for u in range(2): a(f'ds_read_b128 {vr(X[ci]+16*u+4*tt,4)}, v{ra+tt} offset:{8192*ci+4096*u}')
    for ci in range(2):
        for tt in range(4):
            a(f's_waitcnt lgkmcnt({14-8*ci-2*tt})')
            for u in range(2):
                for po in range(2): mf16(a, acc[ci] + 8 * u + 4 * po, B1 + 16 * po + 4 * tt, X[ci] + 16 * u + 4 * tt, tt == 0)
    for ci in range(2):
        for u in range(2):
            for c in range(4): a(f'v_cvt_pk_bf16_f32 v{pk[ci]+4*u+c}, v{acc[ci]+8*u+c}, -v{acc[ci]+8*u+4+c}')
            a(f'buffer_store_dwordx4 {vr(pk[ci]+4*u,4)}, v{l32}, s[24:27], s{46+u} offen offset:{16*ci}{SC()}')
    stamp(a, 10)
    a.label(skip)
    if CFG['fused']:
        a(f's_lshl_b32 s78, s2, 2\ns_add_u32 s78, s78, {FC}')
        publish(a, 78, t)
    stamp(a, 11)

def job_I(a):
    a.nv = NFIX
    IB = 16384
    srd(a, 36, 18, M.S * M.D * 2)
    octet(a, 40); rowbase(a, 41, 40, 43)
    Y = a.v(16); tb = a.v(72); fl = a.v(4); xv = a.u(10); pv = a.u(10); fp = a.v()
    kp = a.v(); vp = a.v(); vm = a.v(); t0 = a.v(); t1 = a.v(); t2 = a.v(); xo = a.v(); fo = a.v()
    a(f'''
    s_and_b32 s42, s3, 1
    s_lshr_b32 s44, s3, 1
    s_mul_i32 s45, s3, 12288
    s_add_u32 s45, s45, {TI_OFF}
    s_mul_i32 s46, s44, 6144
    s_add_u32 s46, s46, {TI_OFF + 8*6144}
    v_lshrrev_b32 v{kp}, 1, v0
    v_and_b32 v{t2}, 1, v0
    v_lshlrev_b32 v{t2}, 5, v{t2}
    v_lshrrev_b32 v{t0}, 1, v{kp}
    v_mul_u32_u24 v{vp}, {PSTR}, v{t0}
    v_and_b32 v{t0}, 1, v{kp}
    v_lshl_add_u32 v{t2}, v{t0}, 4, v{t2}
    v_add_u32 v{vp}, v{vp}, v{t2}
    v_sub_u32 v{t1}, 80, v{kp}
    v_lshrrev_b32 v{t1}, 1, v{t1}
    v_and_b32 v{t1}, 63, v{t1}
    v_mul_u32_u24 v{vm}, {PSTR}, v{t1}
    v_add_u32 v{vm}, v{vm}, v{t2}
    v_mov_b32 v{t1}, {OOB}
    v_cmp_ge_u32 vcc, 80, v{kp}
    v_cndmask_b32 v{vp}, v{t1}, v{vp}, vcc
    v_cndmask_b32 v{vm}, v{t1}, v{vm}, vcc
    s_lshl_b32 s70, s40, 6
    s_add_u32 s70, s70, {M.Y1_OFF}
    s_add_u32 s71, s70, {80*PSTR}
    s_add_u32 s72, s70, {120*PSTR}
    s_add_u32 s73, s70, {40*PSTR}
    s_mov_b32 s48, {FC}
    s_bfe_u32 s49, s40, 0x40003
    s_lshl_b32 s49, s49, 6
    s_add_u32 s49, s49, {FP}
    v_lshlrev_b32 v{fo}, 2, v{N16}
    ''')
    def yloads():
        for q in range(4): a(f'buffer_load_dwordx4 {vr(Y+4*q,4)}, v{vp if q < 2 else vm}, s[24:27], s{70+q} offen{SC()}')
    if not CFG['fused']: yloads()
    for i in range(12):
        if i % 4 == 0 and i: a('s_add_u32 s45, s45, 4096')
        a(f'buffer_load_dwordx4 {vr(tb+4*i,4)}, v{L16}, s[32:35], s45 offen offset:{(i%4)*1024}')
    for i in range(6):
        if i == 4: a('s_add_u32 s46, s46, 4096')
        a(f'buffer_load_dwordx4 {vr(tb+48+4*i,4)}, v{L16}, s[32:35], s46 offen offset:{(i%4)*1024}')
    a(f'''
    s_mul_i32 s41, s41, 1280
    s_lshl_b32 s47, s3, 8
    s_add_u32 s50, s41, s47
    s_lshl_b32 s47, s44, 7
    s_add_u32 s51, s41, s47
    s_mul_i32 s47, s42, 1280
    s_add_u32 s51, s51, s47
    s_add_u32 s51, s51, 1024
    s_add_u32 s52, s50, {M.P_OFF}
    s_add_u32 s53, s51, {M.P_OFF}
    v_mul_u32_u24 v{xo}, {32*1280}, v{G4}
    v_lshl_add_u32 v{xo}, v{N16}, 3, v{xo}
    ''')
    xa = [(50, 0), (50, 1280), (50, 128), (50, 1280 + 128), (51, 0)]
    for jn in range(5): a(f'buffer_load_dwordx2 {vr(xv+2*jn,2)}, v{xo}, s[28:31], s{xa[jn][0]} offen offset:{xa[jn][1]}')
    def ploads():
        for jn in range(5): a(f'buffer_load_dwordx2 {vr(pv+2*jn,2)}, v{xo}, s[24:27], s{xa[jn][0]+2} offen offset:{xa[jn][1]}{SC()}')
    if CFG['fused']: flags_issue4(a, fl, 48)
    else: ploads()
    tw = a.u(6); ra = a.u(6); rb_ = a.u(6); wb = a.v(); u = a.v(24); fa = a.v(72)
    twiddles3(a, kp, tw, t0, 640.0)
    a(f'''
    v_lshrrev_b32 v{t0}, 2, v{kp}
    v_lshlrev_b32 v{wb}, 4, v{t0}
    v_and_b32 v{t0}, 3, v{kp}
    v_lshl_add_u32 v{wb}, v{t0}, 2, v{wb}
    v_and_b32 v{t0}, 1, v0
    v_lshl_add_u32 v{wb}, v{t0}, 13, v{wb}
    s_lshl_b32 s55, s42, 13
    ''')
    swz_read_addr(a, ra, 6, 9, IB, t0)
    for t in range(6): a(f'v_add_u32 v{rb_+t}, s55, v{ra+t}')
    if CFG['fused']:
        a('s_waitcnt vmcnt(0)')
        flags_wait(a, fl, 4, lambda: flags_issue4(a, fl, 48))
        stamp(a, 12)
        yloads(); flags_issue(a, fp, fo, 49)
        a('s_waitcnt vmcnt(1)')
    else: a('s_waitcnt vmcnt(28)')
    stamp(a, 13)
    for i in range(4):
        for q in range(4): a(f'v_lshlrev_b32 v{u+2*q}, 16, v{Y+4*q+i}\nv_and_b32 v{u+2*q+1}, 0xffff0000, v{Y+4*q+i}')
        e0, e1, o0, o1 = u + 8, u + 10, u + 12, u + 14
        a(f'''
        v_add_f32 v{e0}, v{u}, v{u+4}
        v_sub_f32 v{e0+1}, v{u+1}, v{u+5}
        v_sub_f32 v{e1}, v{u}, v{u+4}
        v_add_f32 v{e1+1}, v{u+1}, v{u+5}
        v_add_f32 v{o0}, v{u+2}, v{u+6}
        v_sub_f32 v{o0+1}, v{u+3}, v{u+7}
        v_sub_f32 v{o1}, v{u+2}, v{u+6}
        v_add_f32 v{o1+1}, v{u+3}, v{u+7}
        v_add_f32 v{u}, v{e0}, v{o0}
        v_add_f32 v{u+1}, v{e0+1}, v{o0+1}
        v_sub_f32 v{u+2}, v{e1}, v{o1+1}
        v_add_f32 v{u+3}, v{e1+1}, v{o1}
        v_sub_f32 v{u+4}, v{e0}, v{o0}
        v_sub_f32 v{u+5}, v{e0+1}, v{o0+1}
        v_add_f32 v{u+6}, v{e1}, v{o1+1}
        v_sub_f32 v{u+7}, v{e1+1}, v{o1}
        v_cvt_pk_bf16_f32 v{u+16}, v{u}, v{u+1}
        ''')
        for r in (1, 2, 3):
            c, s = tw + 2 * r - 2, tw + 2 * r - 1; x = u + 8 + 2 * r
            a(f'v_mul_f32 v{x}, v{u+2*r}, v{c}\nv_mul_f32 v{x+1}, v{u+2*r+1}, v{c}\nv_fma_f32 v{x}, -v{u+2*r+1}, v{s}, v{x}\nv_fmac_f32 v{x+1}, v{u+2*r}, v{s}\nv_cvt_pk_bf16_f32 v{u+16+r}, v{x}, v{x+1}')
        for r in range(4): a(f'v_xor_b32 v{u+20+r}, {(4*i+r)<<4}, v{wb}\nds_write_b32 v{u+20+r}, v{u+16+r} offset:{IB+(4*i+r)*512}')
    a('s_waitcnt lgkmcnt(0)\ns_barrier')
    for t in range(6): a(f'ds_read_b128 {vr(fa+4*t,4)}, v{ra+t}\nds_read_b128 {vr(fa+24+4*t,4)}, v{ra+t} offset:8192')
    for t in range(6): a(f'ds_read_b128 {vr(fa+48+4*t,4)}, v{rb_+t}')
    acc = u
    jobs = [(0, 0), (24, 0), (0, 24), (24, 24), (48, 48)]
    if not CFG['fused']: a('s_waitcnt vmcnt(10)')
    a('s_waitcnt lgkmcnt(0)')
    for t in range(6):
        for jn, (f_, to) in enumerate(jobs): mf16(a, acc + 4 * jn, fa + f_ + 4 * t, tb + to + 4 * t, t == 0)
    stamp(a, 14)
    a('s_waitcnt vmcnt(0)')
    if CFG['fused']:
        flags_wait(a, fp, 1, lambda: flags_issue(a, fp, fo, 49))
        stamp(a, 15)
        ploads()
    s = fa
    for jn in range(5):
        for h in range(2): a(f'v_lshlrev_b32 v{s+8*jn+2*h}, 16, v{xv+2*jn+h}\nv_and_b32 v{s+8*jn+2*h+1}, 0xffff0000, v{xv+2*jn+h}')
        for r in range(4): a(f'v_add_f32 v{s+8*jn+r}, v{s+8*jn+r}, v{acc+4*jn+r}')
    for jn in range(5):
        if CFG['fused']: a(f's_waitcnt vmcnt(4)')
        for h in range(2): a(f'v_lshlrev_b32 v{s+8*jn+4+2*h}, 16, v{pv+2*jn+h}\nv_and_b32 v{s+8*jn+4+2*h+1}, 0xffff0000, v{pv+2*jn+h}')
        for r in range(4): a(f'v_add_f32 v{s+8*jn+r}, v{s+8*jn+r}, v{s+8*jn+4+r}')
        a(f'v_cvt_pk_bf16_f32 v{xv+2*jn}, v{s+8*jn}, v{s+8*jn+1}\nv_cvt_pk_bf16_f32 v{xv+2*jn+1}, v{s+8*jn+2}, v{s+8*jn+3}')
        a(f'buffer_store_dwordx2 {vr(xv+2*jn,2)}, v{xo}, s[36:39], s{xa[jn][0]} offen offset:{xa[jn][1]}')

SLOT = 20480
def job_G(a):
    a.nv = NFIX
    acc = a.v(96, 4); fr = [a.v(20), a.v(20)]; vA = a.v(6); vB = a.v(4); dW = a.v(3); dX = a.v(2)
    t0 = a.v(); t1 = a.v(); t2 = a.v(); t3 = a.v(); ep = a.v(); fl = a.v(4); cs = a.v(30); mm = a.v(2); co = a.v(); mo = a.v()
    a(f'''
    s_and_b32 s46, s2, 1
    s_lshl_b32 s46, s46, 3
    s_bfe_u32 s48, s2, 0x30003
    s_add_u32 s46, s46, s48
    s_bfe_u32 s47, s2, 0x20001
    s_lshl_b32 s47, s47, 2
    s_lshr_b32 s49, s2, 6
    s_add_u32 s47, s47, s49
    s_mul_i32 s49, s49, 5
    s_lshl_b32 s48, s48, 1
    s_lshr_b32 s40, s48, 2
    s_add_u32 s48, s48, s40
    s_add_u32 s40, s48, s49
    s_cmp_ge_u32 s40, 20
    s_cselect_b32 s48, 20, 0
    s_sub_u32 s40, s40, s48
    s_and_b32 s50, s3, 1
    s_lshr_b32 s51, s3, 1
    s_cmp_eq_u32 s50, 0
    s_cselect_b32 s36, s12, s14
    s_cselect_b32 s37, s13, s15
    s_mov_b32 s38, {M.D*M.F*2}
    s_mov_b32 s39, 0x00020000
    s_mul_i32 s41, s51, {16*3072}
    s_mul_i32 s48, s47, 192
    s_add_u32 s41, s41, s48
    s_lshl_b32 s42, s46, 7
    s_lshl_b32 s48, s3, 5
    s_add_u32 s42, s42, s48
    s_mul_i32 s42, s42, 1280
    s_mul_i32 s44, s3, 3072
    s_lshl_b32 s45, s3, 11
    s_add_u32 s45, s45, 12288
    s_lshl_b32 s49, s50, 1
    ''')
    for i in range(3):
        a(f'''
        v_add_u32 v{t0}, {64*i}, v1
        v_mul_u32_u24 v{t1}, 171, v{t0}
        v_lshrrev_b32 v{t1}, 11, v{t1}
        v_mul_u32_u24 v{t2}, 12, v{t1}
        v_sub_u32 v{t0}, v{t0}, v{t2}
        v_xor_b32 v{t0}, s49, v{t0}
        v_mul_u32_u24 v{t1}, 3072, v{t1}
        v_lshl_add_u32 v{dW+i}, v{t0}, 4, v{t1}
        ''')
        if i: a(f'v_subrev_u32 v{dW+i}, {1024*i}, v{dW+i}')
    a(f'''
    v_lshrrev_b32 v{t0}, 2, v1
    v_and_b32 v{t1}, 3, v1
    v_xor_b32 v{t1}, v{t1}, v{G4}
    v_mul_u32_u24 v{t0}, 1280, v{t0}
    v_lshl_add_u32 v{dX}, v{t1}, 4, v{t0}
    v_add_u32 v{dX+1}, {16*1280-1024}, v{dX}
    s_mov_b32 s54, 0
    ''')
    def dma(sl):
        return [f's_mul_i32 s52, s40, {32*3072}\ns_add_u32 s52, s52, s41\ns_or_b32 s52, s52, s54\ns_add_u32 m0, s44, {sl*SLOT}\ns_lshl_b32 s53, s40, 6\nbuffer_load_dwordx4 v{dW}, s[36:39], s52 offen lds',
                f's_add_u32 s53, s53, s42\nbuffer_load_dwordx4 v{dW+1}, s[36:39], s52 offen offset:1024 lds',
                f's_or_b32 s53, s53, s54\nbuffer_load_dwordx4 v{dW+2}, s[36:39], s52 offen offset:2048 lds',
                f's_add_u32 m0, s45, {sl*SLOT}\ns_add_u32 s40, s40, 1\nbuffer_load_dwordx4 v{dX}, s[28:31], s53 offen lds',
                f's_cmp_eq_u32 s40, 20\nbuffer_load_dwordx4 v{dX+1}, s[28:31], s53 offen offset:1024 lds\ns_cselect_b32 s40, 0, s40']
    for sl in range(4):
        for g in (dma(sl) if sl < 3 else dma(sl)[:3]): a(g)
    stamp(a, 1)
    a(f'''
    v_and_b32 v{t0}, 1, v{G4}
    v_lshrrev_b32 v{t1}, 5, v1
    v_lshrrev_b32 v{t2}, 2, v{N16}
    v_lshl_add_u32 v{t2}, v{t1}, 3, v{t2}
    v_mul_u32_u24 v{t2}, 192, v{t2}
    v_mul_u32_u24 v{t3}, 3072, v{t0}
    v_add_u32 v{t2}, v{t2}, v{t3}
    v_and_b32 v{t3}, 3, v1
    v_lshl_add_u32 v{t2}, v{t3}, 3, v{t2}
    s_mul_i32 s48, s50, 3
    ''')
    for i in range(3):
        a(f's_add_u32 s49, s48, {i}\nv_xor_b32 v{t3}, s49, v{t0}\nv_lshl_add_u32 v{vA+i}, v{t3}, 5, v{t2}\nv_add_u32 v{vA+3+i}, {2*SLOT}, v{vA+i}')
    a(f'''
    v_and_b32 v{t2}, 31, v1
    v_bfe_u32 v{t3}, v1, 2, 2
    v_xor_b32 v{t3}, v{t3}, v{t1}
    v_lshlrev_b32 v{t3}, 4, v{t3}
    v_lshl_add_u32 v{t3}, v{t2}, 6, v{t3}
    s_lshl_b32 s48, s51, 12
    s_add_u32 s48, s48, 12288
    v_add_u32 v{vB}, s48, v{t3}
    v_xor_b32 v{vB+1}, 32, v{vB}
    v_add_u32 v{vB+2}, {2*SLOT}, v{vB}
    v_add_u32 v{vB+3}, {2*SLOT}, v{vB+1}
    v_mul_u32_u24 v{co}, 6144, v{t0}
    v_lshl_add_u32 v{co}, v{N16}, 2, v{co}
    v_lshlrev_b32 v{mo}, 3, v{t2}
    v_mov_b32 v{t3}, {OOB}
    v_cmp_gt_u32 vcc, 32, v1
    v_cndmask_b32 v{co}, v{t3}, v{co}, vcc
    v_cndmask_b32 v{mo}, v{t3}, v{mo}, vcc
    ''')
    for i in range(96): a(f'v_mov_b32 v{acc+i}, 0')
    def reads(sl, t, F):
        hi = sl >> 1; o = (sl & 1) * SLOT
        A = [[f'ds_read_b64_tr_b16 {vr(F+4*i+2*rd,2)}, v{vA+3*hi+i} offset:{o+t*6144+rd*768}' for rd in range(2)] for i in range(3)]
        B = [f'ds_read_b128 {vr(F+12+4*b,4)}, v{vB+2*hi+t} offset:{o+b*2048}' for b in range(2)]
        return A[0] + B + A[1] + A[2]
    a('s_waitcnt vmcnt(13)\ns_barrier')
    stamp(a, 2)
    for r in reads(0, 0, fr[0]): a(r)
    def extras():
        epoch_get(a, ep)
        flags_wait(a, fl, 4, lambda: flags_issue4(a, fl, 56))
        a(f'''
        s_mul_i32 s57, s47, 384
        s_mul_i32 s58, s50, 192
        s_add_u32 s57, s57, s58
        s_add_u32 s57, s57, {M.CS_OFF}
        s_lshl_b32 s58, s46, 10
        s_lshl_b32 s59, s51, 9
        s_add_u32 s58, s58, s59
        s_add_u32 s58, s58, {M.ST_OFF}
        buffer_load_dword v{mm}, v{mo}, s[24:27], s58 offen sc1
        buffer_load_dword v{mm+1}, v{mo}, s[24:27], s58 offen offset:256 sc1
        ''')
        for kb in range(10):
            for i in range(3): a(f'buffer_load_dword v{cs+3*kb+i}, v{co}, s[24:27], s57 offen offset:{64*i} sc1')
            a('s_add_u32 s57, s57, 12288')
    def body(last):
        for sl in range(4):
            for t in range(2):
                F = fr[t]
                mf = []
                for i in range(3):
                    for b in range(2):
                        d = vr(acc + 16 * (2 * i + b), 16)
                        mf.append(f'v_mfma_f32_32x32x16_bf16 {d}, {vr(F+4*i,4)}, {vr(F+12+4*b,4)}, {d}')
                a('s_waitcnt lgkmcnt(0)')
                if t == 0:
                    nx = reads(sl, 1, fr[1])
                    gaps = [nx[0:3], nx[3:6], nx[6:8], [], [], []]
                    if not last or sl == 0:
                        pd = dma((sl + 3) % 4)[3:]
                        gaps[3].append(pd[0]); gaps[4].append(pd[1])
                    for k in range(6):
                        a(mf[k])
                        for x in gaps[k]: a(x)
                    if last and sl == 0: extras()
                elif last and sl == 3:
                    for k in range(6): a(mf[k])
                else:
                    nx = reads((sl + 1) % 4, 0, fr[0]); pd = dma(sl)[:3] if not last else [None] * 3
                    a(mf[0]); a(mf[1])
                    a(f's_waitcnt vmcnt({10 if not last else 42 - 5 * sl})\ns_barrier')
                    gaps = [[], nx[0:4], nx[4:8], [pd[0]], [pd[1]], [pd[2]]]
                    for k in range(1, 6):
                        if k > 1: a(mf[k])
                        for x in gaps[k]:
                            if x: a(x)
    a('s_mov_b32 s55, 0')
    loop = lab('gloop'); nx3 = lab('gn3')
    a.label(loop, flush=False)
    a(f's_cmp_eq_u32 s55, 3\ns_cbranch_scc0 {nx3}\ns_mov_b32 s56, {FS}')
    epoch_issue(a, ep); flags_issue4(a, fl, 56)
    a.label(nx3, flush=False)
    body(False)
    a(f's_add_u32 s55, s55, 1\ns_cmp_lt_u32 s55, 4\ns_cbranch_scc1 {loop}')
    stamp(a, 3)
    body(True)
    stamp(a, 4)
    F = fr[0]
    a('s_waitcnt vmcnt(0)')
    for i in range(3):
        for kb in range(1, 10): a(f'v_add_f32 v{cs+i}, v{cs+i}, v{cs+3*kb+i}')
        a(f'''
        v_cvt_pk_bf16_f32 v{F+4*i}, v{cs+i}, v{cs+i}
        v_lshlrev_b32 v{t0}, 16, v{F+4*i}
        v_sub_f32 v{t0}, v{cs+i}, v{t0}
        v_cvt_pk_bf16_f32 v{F+4*i+1}, v{t0}, v{VZ}
        v_mov_b32 v{F+4*i+2}, 0
        v_mov_b32 v{F+4*i+3}, 0
        ''')
    for b in range(2):
        a(f'''
        v_cvt_pk_bf16_f32 v{F+12+4*b+1}, -v{mm+b}, v{VZ}
        v_lshlrev_b32 v{t0}, 16, v{F+12+4*b+1}
        v_add_f32 v{t0}, v{mm+b}, v{t0}
        v_cvt_pk_bf16_f32 v{F+12+4*b}, -v{mm+b}, -v{t0}
        v_mov_b32 v{F+12+4*b+2}, 0
        v_mov_b32 v{F+12+4*b+3}, 0
        ''')
    for i in range(3):
        for b in range(2):
            d = vr(acc + 16 * (2 * i + b), 16)
            a(f'v_mfma_f32_32x32x16_bf16 {d}, {vr(F+4*i,4)}, {vr(F+12+4*b,4)}, {d}')
    a(f'''
    s_lshl_b32 s54, s46, 1
    s_add_u32 s54, s54, s51
    s_mul_i32 s54, s54, 196608
    s_add_u32 s54, s54, {M.H_OFF}
    s_mul_i32 s55, s47, 6
    s_mul_i32 s56, s50, 3
    s_add_u32 s55, s55, s56
    v_lshlrev_b32 v{t0}, 4, v{N16}
    v_bfe_u32 v{t1}, v1, 4, 1
    v_lshl_add_u32 v{t0}, v{t1}, 10, v{t0}
    v_lshrrev_b32 v{t1}, 5, v1
    v_lshl_add_u32 v{t0}, v{t1}, 8, v{t0}
    ''')
    for i in range(3):
        a(f's_add_u32 s56, s55, {i}\ns_lshr_b32 s57, s56, 1\ns_lshl_b32 s57, s57, 12\ns_and_b32 s56, s56, 1\ns_lshl_b32 s56, s56, 9\ns_add_u32 s57, s57, s56\ns_add_u32 s{58+i}, s57, s54')
    for i in range(3):
        for b in range(2):
            A = acc + 16 * (2 * i + b)
            for r in range(8): a(f'v_mul_f32 v{A+r}, v{A+r}, v{A+8+r}')
            for r in range(4): a(f'v_cvt_pk_bf16_f32 v{A+8+r}, v{A+2*r}, v{A+2*r+1}')
            a(f'buffer_store_dwordx4 {vr(A+8,4)}, v{t0}, s[24:27], s{58+i} offen offset:{b*2048}{SC()}')
    stamp(a, 5)
    if CFG['fused']:
        a(f's_lshl_b32 s78, s46, 4\ns_add_u32 s78, s78, s47\ns_lshl_b32 s78, s78, 2\ns_add_u32 s78, s78, {FH}')
        publish(a, 78, t1)
    stamp(a, 6)

def job_D(a):
    a.nv = NFIX
    acc = a.v(80, 4); buf = a.v(144, 4); l16b = a.v(); vb = a.v(4); vw = a.v(3); t0 = a.v(); t1 = a.v(); r2 = a.v(); fh = a.v(); fo = a.v()
    a(f'''
    s_and_b32 s46, s2, 3
    s_lshl_b32 s46, s46, 3
    s_bfe_u32 s48, s2, 0x30003
    s_add_u32 s46, s46, s48
    s_bfe_u32 s47, s2, 0x10002
    s_lshl_b32 s47, s47, 2
    s_lshr_b32 s49, s2, 6
    s_add_u32 s47, s47, s49
    s_mul_i32 s49, s49, 3
    s_lshr_b32 s40, s48, 1
    s_add_u32 s40, s40, s48
    s_add_u32 s40, s40, s49
    s_cmp_ge_u32 s40, 12
    s_cselect_b32 s48, 12, 0
    s_sub_u32 s40, s40, s48
    s_mov_b32 s43, s40
    s_mul_i32 s41, s47, 48
    s_add_u32 s41, s41, s3
    s_mul_i32 s41, s41, 5120
    s_add_u32 s41, s41, {M.WD_OFF}
    s_mul_i32 s42, s46, 48
    s_add_u32 s42, s42, s3
    s_lshl_b32 s42, s42, 12
    s_add_u32 s42, s42, {M.H_OFF}
    v_add_u32 v{l16b}, 4096, v{L16}
    s_lshr_b32 s49, s46, 1
    s_lshl_b32 s49, s49, 6
    s_add_u32 s49, s49, {FH}
    v_lshlrev_b32 v{fo}, 2, v{N16}
    s_lshl_b32 s52, s46, 6
    s_lshl_b32 s53, s3, 4
    s_add_u32 s52, s52, s53
    s_lshl_b32 s53, s52, 3
    s_add_u32 s53, s53, {M.ST_OFF + 4}
    v_lshlrev_b32 v{t0}, 3, v{N16}
    buffer_load_dword v{r2}, v{t0}, s[24:27], s53 offen sc1
    ''')
    for q in range(4):
        a(f's_add_u32 s50, s3, {q}\ns_and_b32 s50, s50, 3\ns_lshl_b32 s51, s50, 10\nv_add_u32 v{vb+q}, s51, v{L16}')
        if q: a(f's_mul_i32 s51, s50, 15360\ns_add_u32 s51, s51, {(q-1)*5120}\nv_add_u32 v{vw+q-1}, s51, v{L16}')
    def ldA(i):
        B = buf + 36 * (i % 4)
        L = [f'buffer_load_dwordx4 {vr(B+4*k,4)}, v{L16 if k < 4 else l16b}, s[24:27], s44 offen offset:{(k%4)*1024}{SC()}' for k in range(5)]
        L[0] = 's_mul_i32 s44, s40, 20480\ns_add_u32 s44, s44, s41\ns_add_u32 s40, s40, 1\n' + L[0]
        L[1] += '\ns_cmp_eq_u32 s40, 12\ns_cselect_b32 s40, 0, s40'
        return L
    def ldB(i):
        B = buf + 36 * (i % 4)
        L = [f'buffer_load_dwordx4 {vr(B+20+4*k,4)}, v{vb+k}, s[24:27], s45 offen{SC()}' for k in range(4)]
        L[0] = 's_lshl_b32 s45, s43, 14\ns_add_u32 s45, s45, s42\ns_add_u32 s43, s43, 1\n' + L[0]
        L[1] += '\ns_cmp_eq_u32 s43, 12\ns_cselect_b32 s43, 0, s43'
        return L
    if CFG['fused']:
        for i in range(4):
            for x in ldA(i): a(x)
        flags_issue(a, fh, fo, 49)
        for i in range(80): a(f'v_mov_b32 v{acc+i}, 0')
        a('s_waitcnt vmcnt(0)')
        flags_wait(a, fh, 1, lambda: flags_issue(a, fh, fo, 49))
        stamp(a, 7)
        for i in range(4):
            for x in ldB(i): a(x)
        first = [12, 8 + 9, 4 + 18, 27]
    else:
        for i in range(4):
            for x in ldA(i) + ldB(i): a(x)
        for i in range(80): a(f'v_mov_b32 v{acc+i}, 0')
        first = [27] * 4
    def body(waits, more):
        for i in range(4):
            B = buf + 36 * i
            a(f's_waitcnt vmcnt({waits[i]})')
            La, Lb = (ldA(i), ldB(i)) if more else ([], [])
            for dt in range(5):
                for q in range(4): mf16(a, acc + 4 * (5 * q + dt), B + 4 * dt, B + 20 + 4 * q, False)
                if La: a(La[dt])
            for x in Lb: a(x)
    body(first, True); stamp(a, 8); body([27] * 4, True); stamp(a, 9); body([27, 18, 9, 0], False)
    stamp(a, 10)
    if CFG['fused']: pass
    for q in range(1, 4):
        for dt in range(5): a(f'ds_write_b128 v{vw+q-1}, {vr(acc+4*(5*q+dt),4)} offset:{dt*1024}')
    a(f'''
    s_mul_i32 s51, s3, 15360
    v_add_u32 v{t0}, s51, v{L16}
    s_mul_i32 s52, s52, 1280
    s_mul_i32 s53, s47, 160
    s_add_u32 s52, s52, s53
    s_add_u32 s52, s52, {M.P_OFF}
    v_mul_u32_u24 v{t1}, 1280, v{N16}
    v_lshl_add_u32 v{t1}, v{G4}, 3, v{t1}
    s_waitcnt lgkmcnt(0)
    s_barrier
    ''')
    for dt in range(5):
        for q in range(3): a(f'ds_read_b128 {vr(acc+20+20*q+4*dt,4)}, v{t0} offset:{(5*q+dt)*1024}')
    rd = buf
    for dt in range(5):
        a(f's_waitcnt lgkmcnt({12-3*dt})')
        for q in range(3):
            for r in range(4): a(f'v_add_f32 v{acc+4*dt+r}, v{acc+4*dt+r}, v{acc+20+20*q+4*dt+r}')
        for r in range(4): a(f'v_mul_f32 v{acc+4*dt+r}, v{acc+4*dt+r}, v{r2}')
        a(f'v_cvt_pk_bf16_f32 v{rd+2*dt}, v{acc+4*dt}, v{acc+4*dt+1}\nv_cvt_pk_bf16_f32 v{rd+2*dt+1}, v{acc+4*dt+2}, v{acc+4*dt+3}')
        a(f'buffer_store_dwordx2 {vr(rd+2*dt,2)}, v{t1}, s[24:27], s52 offen offset:{dt*32}{SC()}')
    stamp(a, 11)
    if CFG['fused']:
        a(f's_lshl_b32 s78, s46, 3\ns_add_u32 s78, s78, s47\ns_lshl_b32 s78, s78, 2\ns_add_u32 s78, s78, {FP}')
        publish(a, 78, t0)

def tables():
    t = np.concatenate([M.table_R().reshape(-1), M.table_I().reshape(-1), M.table_B1().reshape(-1), M.table_A3().reshape(-1)])
    b = M.bf16_bits(t); assert b.size * 2 == TBL_SZ
    q = b.view(np.uint64)
    out = ['.p2align 8', '.type tables,@object', 'tables:']
    for i in range(0, q.size, 8): out.append('.quad ' + ','.join('0x%x' % v for v in q[i:i + 8]))
    return '\n'.join(out)
KN = 'parallel_sum__spectral_gfnet__glu_gated_bilinear__prompt_kernel'
def two_role(a, desc, name, ja, jb):
    prologue(a, name, 512 if jb else 256)
    lb = lab('roleB')
    if jb: a(f's_cmp_ge_u32 s90, 256\ns_cbranch_scc1 {lb}')
    for j in ja: j(a)
    role_end(a, name)
    if jb:
        a.label(lb, flush=False)
        for j in jb: j(a)
        role_end(a, name)
    finish(a, name, desc)
def build(path):
    a = Asm(); desc = []
    if CFG['fused']:
        two_role(a, desc, KN, [job_prep, job_F, job_I], [job_G, job_D])
        hdr = f'; @launch grid=(512,1,1) block=(256,1,1) lds={LDS}\n'
    else:
        two_role(a, desc, 'k1_kernel', [job_prep], [job_G]); two_role(a, desc, 'k2_kernel', [job_F], [job_D]); two_role(a, desc, 'k3_kernel', [job_I], None)
        hdr = ''.join(f'; @launch kernel={k} grid=({g},1,1) block=(256,1,1) lds={LDS}\n' for k, g in (('k1_kernel', 512), ('k2_kernel', 512), ('k3_kernel', 256)))
    src = hdr + '.amdgcn_target "amdgcn-amd-amdhsa--gfx950"\n.text\n' + a.text() + '.section .rodata,"a"\n' + '\n'.join(desc) + '\n' + tables() + '\n'
    open(path, 'w').write(src)
    print('wrote', path, len(src))
if __name__ == '__main__':
    if '--prof' in sys.argv: CFG['prof'] = True; sys.argv.remove('--prof')
    if '--multi' in sys.argv: CFG['fused'] = False; sys.argv.remove('--multi')
    build(sys.argv[1] if len(sys.argv) > 1 else 'parallel_sum__spectral_gfnet__glu_gated_bilinear__prompt.s')
```
